```python
import torch

def _softmax(x, axis=-1):
    return torch.softmax(x, dim=axis)
def _gelu(x):
    return torch.nn.functional.gelu(x, approximate="tanh")
def _silu(x):
    return torch.nn.functional.silu(x)
def _sigmoid(x):
    return torch.sigmoid(x)
def _layernorm(x, axis=-1, eps=1e-5):
    m = x.mean(dim=axis, keepdim=True)
    v = x.var(dim=axis, keepdim=True, unbiased=False)
    return (x - m) / torch.sqrt(v + eps)
def _scatter_add(tgt, idx, src, axis=0):
    return tgt.clone().index_add_(axis, idx, src)
def _segment_sum(src, seg, n):
    out = torch.zeros((n,) + src.shape[1:], dtype=src.dtype)
    return out.index_add_(0, seg, src)
def _pad(x, pw):
    flat = tuple(v for pair in reversed(pw) for v in pair)
    return torch.nn.functional.pad(x, flat)

kernel_name = 'parallel_sum__linear_kernel_hedgehog__moe_arch_mod__prompt'

def setup_inputs():

    _w = (lambda a: (lambda t: t.to(torch.bfloat16) if t.is_floating_point() else t)(torch.as_tensor(a)))
    def _A_setup():
        B, S, D, H = 1, 2048, 640, 32
        Dh = D // H
        return {
            "x": _w((lambda *s: torch.randn(*s, dtype=torch.bfloat16) * 0.05)(B, S, D)),
            "wqkv": _w((lambda *s: torch.randn(*s, dtype=torch.bfloat16) * 0.4)(D, 3 * D)),
            "w_phi": _w((lambda *s: torch.randn(*s, dtype=torch.bfloat16) * 0.4)(H, Dh, Dh) * (Dh ** -0.5)),
            "wo": _w((lambda *s: torch.randn(*s, dtype=torch.bfloat16) * 0.1)(D, D)),
        }
    _A_in = _A_setup()

    def _B_setup():
        B, S, D, F, C = 1, 2048, 640, 1728, 1
        return {
            "x": _w((lambda *s: torch.randn(*s, dtype=torch.bfloat16) * 0.05)(B, S, D)),
            "w_r": _w((lambda *s: torch.randn(*s, dtype=torch.bfloat16) * 0.05)(D)),
            "w_gate": _w((lambda *s: torch.randn(*s, dtype=torch.bfloat16) * 0.05)(D, F)),
            "w_up": _w((lambda *s: torch.randn(*s, dtype=torch.bfloat16) * 0.05)(D, F)),
            "w_down": _w((lambda *s: torch.randn(*s, dtype=torch.bfloat16) * 0.05)(F, D)),
        }
    _B_in = _B_setup()

    return {
        "A_x": _A_in["x"],
        "A_wqkv": _A_in["wqkv"],
        "A_w_phi": _A_in["w_phi"],
        "A_wo": _A_in["wo"],
        "B_x": _B_in["x"],
        "B_w_r": _B_in["w_r"],
        "B_w_gate": _B_in["w_gate"],
        "B_w_up": _B_in["w_up"],
        "B_w_down": _B_in["w_down"],
    }

def reference(A_x, A_wqkv, A_w_phi, A_wo, B_x, B_w_r, B_w_gate, B_w_up, B_w_down):
    def _A_ref(x, wqkv, w_phi, wo):
        B, S, D = x.shape
        H = 32; Dh = D // H
        qkv = (lambda x, *d: x.permute(*d))((x @ wqkv).reshape(B, S, 3, H, Dh), 2, 0, 3, 1, 4)
        q, k, v = qkv[0], qkv[1], qkv[2]
        pq = torch.einsum("bhsd,hdf->bhsf", q, w_phi)
        pk = torch.einsum("bhsd,hdf->bhsf", k, w_phi)
        phi_q = torch.concatenate([_softmax(pq, axis=-1), _softmax(-pq, axis=-1)], axis=-1)
        phi_k = torch.concatenate([_softmax(pk, axis=-1), _softmax(-pk, axis=-1)], axis=-1)
        kv = torch.einsum("bhsf,bhsd->bhfd", phi_k, v)
        z  = torch.einsum("bhsf->bhf", phi_k)
        num = torch.einsum("bhqf,bhfd->bhqd", phi_q, kv)
        den = torch.einsum("bhqf,bhf->bhq", phi_q, z)[..., None] + 1e-6
        o = num / den
        return (lambda x, *d: x.permute(*d))(o, 0, 2, 1, 3).reshape(B, S, D) @ wo

    def _B_ref(x, w_r, w_gate, w_up, w_down):
        B, S, D = x.shape
        C = 1
        r = x @ w_r
        idx = torch.argsort(-r, axis=-1)[:, :C]
        idx_e = (lambda x, n, axis: torch.repeat_interleave(x, n, dim=axis))(idx.reshape(B, C, 1), D, axis=2)
        x_sel = (lambda x, i, axis: torch.take_along_dim(x, i, dim=axis))(x, idx_e, axis=1)
        g = _silu(x_sel @ w_gate)
        u = x_sel @ w_up
        y = (g * u) @ w_down
        r_sel = _sigmoid((lambda x, i, axis: torch.take_along_dim(x, i, dim=axis))(r, idx, axis=1))
        y = y * r_sel.reshape(B, C, 1)
        b_off = (torch.arange(B) * S).reshape(B, 1)
        flat_idx = (idx + b_off).reshape(B * C)
        zero = (x * 0.0).reshape(B * S, D)
        upd = _scatter_add(zero, flat_idx, y.reshape(B * C, D), axis=0)
        return x + upd.reshape(B, S, D)

    x = A_x
    xn = _layernorm(x, axis=-1)
    return x + _A_ref(xn, A_wqkv, A_w_phi, A_wo) + _B_ref(xn, B_w_r, B_w_gate, B_w_up, B_w_down)
```

```python
import re
from contextlib import contextmanager

REG_RE = re.compile(r"\b([vas])(?:(\d+)|\[(\d+):(\d+)\])")

def regs_of(tok):
    out = []
    for m in REG_RE.finditer(tok):
        k = m.group(1)
        if m.group(2) is not None:
            out.append((k, int(m.group(2))))
        else:
            out += [(k, i) for i in range(int(m.group(3)), int(m.group(4)) + 1)]
    for name in ("vcc", "exec", "m0", "scc"):
        if re.search(r"\b" + name + r"\b", tok):
            out.append(("x", name))
    return out

def split_ops(s):
    out, depth, cur = [], 0, ""
    for ch in s:
        if ch == "[": depth += 1
        if ch == "]": depth -= 1
        if ch == "," and depth == 0:
            out.append(cur.strip()); cur = ""
        else:
            cur += ch
    if cur.strip(): out.append(cur.strip())
    return out

TRANS = ("v_exp_f32", "v_log_f32", "v_rcp_f32", "v_rsq_f32", "v_sqrt_f32", "v_sin_f32", "v_cos_f32", "v_rcp_iflag_f32")
RMW = ("v_fmac_f32", "v_dot2c_f32_bf16", "v_pk_fmac_f16")

class Ins:
    __slots__ = ("text", "mn", "ops", "kind", "defs", "uses", "region", "lds_dma", "passes", "srcc", "wide", "dpp", "comment")
    def __init__(self, text, region):
        self.text = text
        self.region = region
        body = text.split(";")[0].strip()
        parts = body.split(None, 1)
        self.mn = mn = parts[0]
        mn = mn.replace("_e32", "").replace("_e64", "")
        rest = parts[1] if len(parts) > 1 else ""
        ops = split_ops(rest)
        self.ops = ops
        self.defs, self.uses = [], []
        self.lds_dma = False; self.passes = 0; self.srcc = []; self.wide = False
        self.dpp = ("row_" in rest) or ("quad_perm" in rest) or ("wave_" in rest) or ("row_bcast" in rest)
        R = regs_of
        if mn.startswith("v_mfma"):
            self.kind = "mfma"
            self.defs = R(ops[0]); self.uses = R(ops[1]) + R(ops[2]) + R(ops[3]); self.srcc = R(ops[3])
            self.passes = 8 if "32x32" in mn else 4
        elif mn.startswith("v_cmp"):
            self.kind = "valu"; self.defs = R(ops[0]); self.uses = [r for o in ops[1:] for r in R(o)]
        elif mn in ("v_readfirstlane_b32", "v_readlane_b32"):
            self.kind = "valu"; self.defs = R(ops[0]); self.uses = [r for o in ops[1:] for r in R(o)]
        elif mn.startswith("v_permlane") and "swap" in mn:
            self.kind = "valu"; self.defs = R(ops[0]) + R(ops[1]); self.uses = list(self.defs)
        elif mn.startswith("v_"):
            self.kind = "valu"
            self.defs = R(ops[0])
            k = 1
            if mn in ("v_add_co_u32", "v_addc_co_u32", "v_sub_co_u32", "v_subb_co_u32"):
                self.defs += R(ops[1]); k = 2
            self.uses = [r for o in ops[k:] for r in R(o.split(" ")[0] if not o.startswith(("-", "abs", "|")) else o)]
            if mn in RMW or self.dpp or "sdwa" in rest: self.uses += R(ops[0])
            if mn == "v_cndmask_b32" and len(ops) == 3: self.uses.append(("x", "vcc"))
        elif mn.startswith("ds_"):
            self.kind = "ds"
            if mn.startswith(("ds_read", "ds_bpermute", "ds_permute", "ds_swizzle")):
                self.defs = R(ops[0]); self.uses = [r for o in ops[1:] for r in R(o.split(" ")[0])]
            else:
                self.uses = [r for o in ops for r in R(o.split(" ")[0])]
        elif mn.startswith(("buffer_", "global_")):
            self.kind = "vmem"
            toks = rest
            self.lds_dma = bool(re.search(r"\blds\b", toks)) or "_lds_" in mn
            first = [o.split(" ")[0] for o in ops]
            if mn.startswith(("buffer_inv", "buffer_wbl2")):
                pass
            elif "load" in mn and not self.lds_dma:
                self.defs = R(first[0]); self.uses = [r for o in first[1:] for r in R(o)]
            elif "atomic" in mn and "sc0" in toks:
                self.defs = R(first[0]); self.uses = [r for o in first for r in R(o)]
            else:
                self.uses = [r for o in first for r in R(o)]
            if self.lds_dma: self.uses.append(("x", "m0"))
            self.wide = ("store" in mn) and mn.endswith(("x3", "x4"))
        elif mn.startswith(("s_load", "s_buffer_load", "s_memtime", "s_memrealtime")):
            self.kind = "smem"; self.defs = R(ops[0]); self.uses = [r for o in ops[1:] for r in R(o)]
        elif mn in ("s_waitcnt", "s_nop", "s_barrier", "s_endpgm", "s_sleep", "s_setprio", "s_branch") or mn.startswith("s_cbranch"):
            self.kind = "ctl"
            if mn == "s_cbranch_vccnz" or mn == "s_cbranch_vccz": self.uses = [("x", "vcc")]
            if mn.startswith("s_cbranch_exec"): self.uses = [("x", "exec")]
        elif mn.startswith("s_cmp") or mn.startswith("s_bitcmp"):
            self.kind = "salu"; self.uses = [r for o in ops for r in R(o)]
        elif mn.startswith("s_"):
            self.kind = "salu"; self.defs = R(ops[0]) if ops else []
            self.uses = [r for o in ops[1:] for r in R(o)]
            if "saveexec" in mn: self.defs.append(("x", "exec")); self.uses.append(("x", "exec"))
            if mn in ("s_addk_i32", "s_mulk_i32", "s_cmov_b32"): self.uses += R(ops[0])
        else:
            raise ValueError("unknown instruction " + text)

class Handle:
    def __init__(self, cls, idx, region):
        self.cls, self.idx, self.region = cls, idx, region

class Prog:
    def __init__(self):
        self.items = []
        self.region = ()
        self.nreg = 0
        self.auto = True
        self.vm = []
        self.lg = []
        self.vm_done = 0
        self.lg_done = 0
        self.pend = {}
        self.done_stack = []
        self.uid = 0

    def label(self, name):
        self.items.append(("label", name))
    def newlabel(self, base):
        self.uid += 1
        return f"L_{base}_{self.uid}"
    def raw(self, text):
        self.items.append(("raw", text))
    def comment(self, text):
        self.items.append(("raw", "; " + text))

    @contextmanager
    def cond(self):
        self.nreg += 1
        old = self.region
        saved = (self.vm_done, self.lg_done)
        self.region = old + (self.nreg,)
        yield
        self.region = old
        self.vm_done, self.lg_done = saved

    @contextmanager
    def manual(self):
        old = self.auto
        self.auto = False
        yield
        self.auto = old

    def sync_state(self, vm_outstanding=0):
        self.vm_done = len(self.vm); self.lg_done = len(self.lg); self.pend.clear()
        self.items.append(("sync",))

    def snapshot(self):
        return (self.vm_done, self.lg_done, dict(self.pend))
    def restore(self, snap):
        self.vm_done, self.lg_done, self.pend = snap[0], snap[1], dict(snap[2])

    def _count_after(self, lst, idx):
        n = 0
        for k in range(idx + 1, len(lst)):
            r = lst[k][0]
            if self.region[:len(r)] == r: n += 1
        return n
    def _emit_wait(self, vm=None, lg=None):
        parts = []
        if vm is not None: parts.append(f"vmcnt({min(vm, 63)})")
        if lg is not None: parts.append(f"lgkmcnt({min(lg, 15)})")
        self.items.append(Ins("s_waitcnt " + " ".join(parts), self.region))
    def _need(self, cls, idx):
        if cls == "vm":
            if idx < self.vm_done: return None
            n = self._count_after(self.vm, idx)
            return n
        else:
            if idx < self.lg_done: return None
            if any(e[2] for e in self.lg[self.lg_done:]): return 0
            return self._count_after(self.lg, idx)
    def wait(self, *handles):
        vm = lg = None; vi = li = -1
        for h in handles:
            if h is None: continue
            n = self._need(h.cls, h.idx)
            if n is None: continue
            if h.cls == "vm":
                vm = n if vm is None else min(vm, n); vi = max(vi, h.idx)
            else:
                lg = n if lg is None else min(lg, n); li = max(li, h.idx)
        if vm is None and lg is None: return
        self._emit_wait(vm, lg)
        if vm is not None: self.vm_done = max(self.vm_done, vi + 1)
        if lg is not None:
            self.lg_done = len(self.lg) if lg == 0 else max(self.lg_done, li + 1)
    def wait_all(self, vm=True, lg=True):
        self._emit_wait(0 if vm else None, 0 if lg else None)
        if vm: self.vm_done = len(self.vm)
        if lg: self.lg_done = len(self.lg)

    def __call__(self, text):
        h = None
        for line in text.split("\n"):
            line = line.strip()
            if not line: continue
            if line.startswith(";"):
                self.items.append(("raw", line)); continue
            h = self.ins(line)
        return h
    def ins(self, text):
        i = Ins(text, self.region)
        if self.auto:
            hs = []
            for r in set(i.defs + i.uses):
                if r in self.pend:
                    cls, idx = self.pend[r]
                    hs.append(Handle(cls, idx, None))
            self.wait(*hs)
            for r in list(self.pend):
                cls, idx = self.pend[r]
                if (cls == "vm" and idx < self.vm_done) or (cls == "lg" and idx < self.lg_done):
                    del self.pend[r]
        if i.mn == "s_waitcnt" and not self.auto:
            pass
        self.items.append(i)
        h = None
        if i.kind == "vmem":
            self.vm.append((self.region, i.defs)); h = Handle("vm", len(self.vm) - 1, self.region)
            if self.auto:
                for r in i.defs: self.pend[r] = ("vm", h.idx)
        elif i.kind in ("ds", "smem"):
            self.lg.append((self.region, i.defs, i.kind == "smem")); h = Handle("lg", len(self.lg) - 1, self.region)
            if self.auto:
                for r in i.defs: self.pend[r] = ("lg", h.idx)
        return h

    def _required(self, p, c):
        need = 0
        pd = set(p.defs)
        cu, cd = set(c.uses), set(c.defs)
        vreg = lambda s: {r for r in s if r[0] in "va"}
        sreg = lambda s: {r for r in s if r[0] == "s" or r == ("x", "vcc")}
        if p.kind == "valu":
            if c.kind == "mfma" and vreg(pd) & cu: need = max(need, 2)
            if c.kind == "vmem" and sreg(pd) & cu: need = max(need, 5)
            if c.kind == "valu" and sreg(pd) & cu:
                need = max(need, 4 if c.mn.startswith(("v_readlane", "v_writelane")) else 2)
            if c.kind == "valu" and vreg(pd) & cu:
                if c.mn.startswith(("v_readlane", "v_readfirstlane")): need = max(need, 1)
                if c.mn.startswith("v_permlane"): need = max(need, 2)
                if c.dpp: need = max(need, 2)
                if p.mn.replace("_e32", "").replace("_e64", "") in TRANS: need = max(need, 1)
            if c.kind in ("salu", "ctl") and sreg(pd) & cu: need = max(need, 1)
            if c.kind in ("ds", "vmem") and vreg(pd) & cu and p.mn.replace("_e32", "").replace("_e64", "") in TRANS:
                need = max(need, 1)
        if p.kind == "mfma":
            big = p.passes == 8
            if c.kind == "mfma":
                ab = set(regs_of(c.ops[1]) + regs_of(c.ops[2]))
                if pd & ab: need = max(need, 12 if big else 8)
                cc = set(c.srcc)
                if pd & cc:
                    same = (set(p.defs) == cc) and (p.passes == c.passes)
                    if not same: need = max(need, 10 if big else 6)
                if pd & cd and not (pd & cc):
                    need = max(need, 12 if big else 8)
            elif c.kind in ("valu", "ds", "vmem"):
                if pd & (cu | cd): need = max(need, 12 if big else 8)
            if c.kind == "valu" and set(p.srcc) & cd: need = max(need, 7 if big else 3)
        if p.kind == "salu":
            if ("x", "m0") in pd and c.kind == "vmem" and c.lds_dma: need = max(need, 1)
        if p.kind == "vmem" and p.wide:
            data = set(regs_of(p.ops[0] if p.mn.startswith("buffer") else p.ops[1]))
            if data & cd: need = max(need, 2)
        return need

    def _slots(self, i):
        if i.mn == "s_nop": return int(i.ops[0]) + 1
        return 1

    def finalize(self, window=24):
        out = []
        labels = {}
        def scan(prevs, c):
            need = 0; dist = 0
            for p in reversed(prevs):
                r = self._required(p, c)
                if r > dist: need = max(need, r - dist)
                dist += self._slots(p)
                if dist >= window: break
            return need
        hist = []
        for it in self.items:
            if isinstance(it, Ins):
                n = scan(hist, it)
                while n > 0:
                    k = min(n, 16)
                    nop = Ins(f"s_nop {k-1}", it.region); out.append(nop); hist.append(nop); n -= k
                out.append(it); hist.append(it)
            else:
                out.append(it)
                if it[0] == "label": labels[it[1]] = len(out)
        pos = {it[1]: k for k, it in enumerate(out) if not isinstance(it, Ins) and it[0] == "label"}
        for k, it in enumerate(out):
            if isinstance(it, Ins) and (it.mn.startswith("s_cbranch") or it.mn == "s_branch"):
                tgt = it.ops[0]
                if tgt in pos:
                    t = pos[tgt]
                    tail = [x for x in out[:k + 1] if isinstance(x, Ins)][-window:]
                    head = [x for x in out[t:t + 4 * window] if isinstance(x, Ins)][:window]
                    h2 = list(tail)
                    for c in head:
                        n = scan(h2, c)
                        if n > 0:
                            raise RuntimeError(f"hazard across branch to {tgt}: {c.text} needs {n} more states")
                        h2.append(c)
        self.items = out

    def text(self):
        L = []
        for it in self.items:
            if isinstance(it, Ins): L.append("  " + it.text)
            elif it[0] == "label": L.append(it[1] + ":")
            elif it[0] == "raw": L.append(it[1])
        return "\n".join(L) + "\n"

class Alloc:
    def __init__(self, lo, hi):
        self.lo, self.hi = lo, hi
        self.used = {}
        self.high = lo
    def get(self, n=1, align=1, name=""):
        b = self.lo
        while True:
            b = (b + align - 1) // align * align
            if b + n > self.hi: raise RuntimeError(f"out of registers allocating {n} for {name}")
            if all((b + k) not in self.used for k in range(n)): break
            b += 1
        for k in range(n): self.used[b + k] = name
        self.high = max(self.high, b + n)
        return b
    def free(self, b, n=1):
        for k in range(n): self.used.pop(b + k)

def v(i, n=1): return f"v{i}" if n == 1 else f"v[{i}:{i+n-1}]"
def s(i, n=1): return f"s{i}" if n == 1 else f"s[{i}:{i+n-1}]"
```

```python
import sys
sys.path.insert(0, "gen")
from core import *

NAME = "parallel_sum__linear_kernel_hedgehog__moe_arch_mod__prompt_kernel"

WS_EPOCH = 0x0
WS_STATS = 0x1000
WS_CAND  = 0x9000
WS_FLAG1 = 0xA000
WS_FLAG2 = 0xB000
WS_FLAG3 = 0xC000
WS_KVP   = 0x100000
WS_OBUF  = 0x200000
WS_YP    = 0x500000
WS_STAMP = 0x600000
WS_DBG   = 0x800000
WS_SIZE  = 0x4000000
KVP_PAIR = 3360
SPIN_MAX = 40000

KV_WST, KV_XST = 20480, 16384
KV_STAGE = KV_WST + KV_XST
Q_WST, Q_XST = 5120, 32768
Q_STAGE = Q_WST + Q_XST
LDS_TOTAL = 163840
L_MISC = 151552
L_WPHI = L_MISC
L_ZERO = L_WPHI + 4096
L_RC   = L_ZERO + 1024
L_SEL  = L_RC + 64
L_XSEL = L_SEL + 64
L_GUP  = L_XSEL + 1280
L_H    = L_GUP + 1024
L_YS   = L_H + 64
L_END  = L_YS + 3840
assert L_END <= LDS_TOTAL, L_END
KV_XCH = 2 * KV_STAGE
KV_CS  = KV_XCH + 8192
L_PHI, PHI_STR = 0, 352
L_VB, VB_STR = 128 * 352, 224
L_KVO = 143488
assert L_VB + 128 * VB_STR <= KV_XCH
Q_CS = 104448
Q_SUM = 107520
Q_KVT = Q_SUM + 6720
assert 2 * Q_STAGE <= Q_CS and Q_KVT + 3360 <= 3 * Q_STAGE + Q_STAGE
L_WA, L_WB = 0, 81920
L_G = 102400
L_U = L_G + 20480 + 128
assert L_U + 20480 <= L_KVO and L_KVO + 6720 <= L_MISC
L_OT, OT_STR, OT_KH = 102400, 336, 64 * 336
assert L_OT + 2 * OT_KH <= L_MISC
PERM = [0, 1, 3, 4, 2]

def magic(d): return (1 << 32) // d + 1

def wave_sum(k, regs):
    steps = ["row_shr:1 row_mask:0xf bank_mask:0xf bound_ctrl:0", "row_shr:2 row_mask:0xf bank_mask:0xf bound_ctrl:0",
             "row_shr:4 row_mask:0xf bank_mask:0xf bound_ctrl:0", "row_shr:8 row_mask:0xf bank_mask:0xf bound_ctrl:0",
             "row_bcast:15 row_mask:0xa bank_mask:0xf", "row_bcast:31 row_mask:0xc bank_mask:0xf"]
    for st in steps:
        for r in regs: k(f"v_add_f32_dpp {v(r)}, {v(r)}, {v(r)} {st}")

def wave_umax(k, r):
    steps = ["row_shr:1 row_mask:0xf bank_mask:0xf bound_ctrl:0", "row_shr:2 row_mask:0xf bank_mask:0xf bound_ctrl:0",
             "row_shr:4 row_mask:0xf bank_mask:0xf bound_ctrl:0", "row_shr:8 row_mask:0xf bank_mask:0xf bound_ctrl:0",
             "row_bcast:15 row_mask:0xa bank_mask:0xf", "row_bcast:31 row_mask:0xc bank_mask:0xf"]
    for st in steps: k(f"v_max_u32_dpp {v(r)}, {v(r)}, {v(r)} {st}")

class Base:
    def __init__(self, opts):
        self.o = opts
        self.k = Prog()
        self.V = Alloc(0, 168)
        self.S = Alloc(0, 102)
        self.S.get(4, name="entry")
        self.nbar = 0
    def sget(self, n=1, align=1, name=""): return self.S.get(n, align if n == 1 else max(align, 2 if n < 4 else 4), name)
    def vget(self, n=1, align=1, name=""): return self.V.get(n, align, name)
    def vfree(self, *pairs):
        for r, n in pairs: self.V.free(r, n)
    def srd(self, dst, ptr, size):
        self.k(f"s_mov_b32 {s(dst)}, {s(ptr)}\ns_mov_b32 {s(dst+1)}, {s(ptr+1)}\ns_mov_b32 {s(dst+2)}, {size}\ns_mov_b32 {s(dst+3)}, 0x20000")
    def divmod_(self, q, r, x, d, stmp):
        k = self.k
        k(f"s_mov_b32 {s(stmp)}, {magic(d)}\nv_mul_hi_u32 {v(q)}, {v(x)}, {s(stmp)}\nv_mul_u32_u24 {v(r)}, {d}, {v(q)}\nv_sub_u32 {v(r)}, {v(x)}, {v(r)}")
    def barrier(self, tag=""):
        self.bars.append(tag)
        self.k("s_barrier" + (f"   ; {tag}" if tag else ""))
    def lane0(self):
        from contextlib import contextmanager
        @contextmanager
        def cm():
            T = self.sT
            self.k(f"s_mov_b64 {s(T+6,2)}, exec\ns_mov_b64 exec, 1")
            yield
            self.k(f"s_mov_b64 exec, {s(T+6,2)}")
        return cm()
    def snap(self): return (dict(self.V.used), dict(self.S.used), self.k.snapshot())
    def rest(self, sn): self.V.used, self.S.used = dict(sn[0]), dict(sn[1]); self.k.restore(sn[2])
    def stamp(self, i):
        if self.o.get("stamps"):
            self.k(f"{'s_memtime' if self.o.get('cyc') and i > 0 else 's_memrealtime'} {s(self.sStamp+2*i,2)}")
    def cstamp(self, i):
        if self.o.get("stamps"): self.k(f"s_memtime {s(self.sStamp+2*i,2)}")
    def stamps_out(self):
        if not self.o.get("stamps"): return
        k = self.k; T = self.sT
        t = self.vget(2, name="st")
        k.wait_all()
        k(f"s_mul_i32 {s(T)}, s2, 12\ns_add_u32 {s(T)}, {s(T)}, {s(self.sWave)}\ns_lshl_b32 {s(T)}, {s(T)}, 6\ns_add_u32 {s(T)}, {s(T)}, {WS_STAMP}")
        k(f"v_mov_b32 v{t+1}, 0")
        with self.lane0():
            for i in range(10):
                k(f"v_mov_b32 v{t}, {s(self.sStamp+2*i)}\nbuffer_store_dword v{t}, v{t+1}, {s(self.rWS,4)}, {s(T)} offen offset:{4*i}")
        k.wait_all()
        self.V.free(t, 2)
    def dump(self, reg, n, base, stride_w):
        k = self.k; T = self.sT
        t = self.vget(1, name="dump")
        k(f"s_lshl_b32 {s(T)}, s2, 3\ns_add_u32 {s(T)}, {s(T)}, {s(self.sWave)}\ns_mul_i32 {s(T)}, {s(T)}, {stride_w}\ns_add_u32 {s(T)}, {s(T)}, {WS_DBG+base}")
        k(f"v_lshlrev_b32 v{t}, 2, v{self.vL}")
        for j in range(n):
            k(f"v_add_u32 v{t}, {256 if j else 0}, v{t}\nbuffer_store_dword v{reg+j}, v{t}, {s(self.rWS,4)}, {s(T)} offen")
        k.wait_all()
        self.V.free(t, 1)
    def poll(self, vaddr, ntag_lanes_mask_reg=None, name="poll"):
        k = self.k; T = self.sT
        t = self.vget(1, name="pollv")
        again, ok = k.newlabel(name), k.newlabel(name + "_ok")
        k.wait_all()
        with k.manual():
            k(f"s_mov_b32 {s(T+2)}, 0")
            k.label(again)
            k(f"buffer_load_dword v{t}, v{vaddr}, {s(self.rWS,4)}, 0 offen sc1\ns_waitcnt vmcnt(0)")
            k(f"v_cmp_ne_u32 vcc, {s(self.sTag)}, v{t}\ns_add_u32 {s(T+2)}, {s(T+2)}, 1\ns_cmp_gt_u32 {s(T+2)}, {SPIN_MAX}\ns_cbranch_scc1 {ok}")
            k(f"s_cbranch_vccnz {again}")
            k.label(ok)
        k.sync_state()
        self.V.free(t, 1)

class Kern(Base):
    def prologue(self):
        k = self.k
        k.raw(f".globl {NAME}\n.p2align 8\n.type {NAME},@function\n{NAME}:")
        k("s_cmp_ge_u32 s2, 256\ns_cbranch_scc1 L_end")
        P = self.sget(16, 4, "ptrs0"); P2 = self.sget(8, 4, "ptrs1")
        self.pX, self.pW, self.pPHI, self.pWO, self.pWR, self.pWG, self.pWU = P, P+2, P+4, P+6, P+10, P+12, P+14
        self.pWD, self.pOUT, self.pDBG, self.pWS = P2, P2+2, P2+4, P2+6
        k(f"s_load_dwordx16 {s(P,16)}, s[0:1], 0\ns_load_dwordx8 {s(P2,8)}, s[0:1], 64")
        for nm in ("sWave", "sTag", "sEp", "sA", "sB", "sSlot", "sMaskHi", "sTok0", "sGrp", "sTB", "sC", "sCC", "sStgN", "sStg", "sDel", "sOffW", "sOffX"):
            setattr(self, nm, self.sget(name=nm))
        self.sT = T = self.sget(8, 4, "tmp")
        self.V.get(1, name="tid")
        self.vL = self.vget(name="lane")
        k(f"v_lshrrev_b32 v{self.vL}, 6, v0")
        k(f"v_readfirstlane_b32 {s(self.sWave)}, v{self.vL}")
        k(f"v_and_b32 v{self.vL}, 63, v0")
        k(f"s_and_b32 {s(T)}, s2, 7\ns_lshr_b32 {s(self.sSlot)}, s2, 3\ns_lshr_b32 {s(self.sA)}, {s(T)}, 1\ns_and_b32 {s(self.sB)}, {s(T)}, 1")
        k(f"s_mov_b32 {s(self.sMaskHi)}, 0xffff0000")
        self.rX = self.sget(4, 4, "srdX"); self.rW = self.sget(4, 4, "srdW"); self.rWS = self.sget(4, 4, "srdWS"); self.rT = self.sget(4, 4, "srdT")
        if self.o.get("stamps"):
            self.sStamp = self.sget(20, 4, "stamps")
            for i in range(10): k(f"s_mov_b32 {s(self.sStamp+2*i)}, 0")
        k.wait_all(vm=False)
        self.srd(self.rX, self.pX, 2621440); self.srd(self.rW, self.pW, 2457600); self.srd(self.rWS, self.pWS, WS_SIZE)
        k(f"s_load_dword {s(self.sEp)}, {s(self.pWS,2)}, {WS_EPOCH}")
        self.stamp(0)

    def role_scalars(self, kv):
        k = self.k; T = self.sT
        k(f"s_and_b32 {s(T)}, {s(self.sSlot)}, 15")
        if kv:
            k(f"s_and_b32 {s(T+1)}, {s(T)}, 3\ns_lshl_b32 {s(self.sTB)}, {s(self.sA)}, 2\ns_add_u32 {s(self.sTB)}, {s(self.sTB)}, {s(T+1)}")
            k(f"s_lshr_b32 {s(T+1)}, {s(T)}, 2\ns_lshl_b32 {s(self.sGrp)}, {s(self.sB)}, 2\ns_add_u32 {s(self.sGrp)}, {s(self.sGrp)}, {s(T+1)}")
            k(f"s_lshl_b32 {s(self.sTok0)}, {s(self.sTB)}, 7")
        else:
            k(f"s_and_b32 {s(T+1)}, {s(T)}, 1\ns_lshl_b32 {s(self.sTB)}, {s(self.sA)}, 1\ns_add_u32 {s(self.sTB)}, {s(self.sTB)}, {s(T+1)}")
            k(f"s_lshr_b32 {s(T+1)}, {s(T)}, 1\ns_lshl_b32 {s(self.sGrp)}, {s(self.sB)}, 3\ns_add_u32 {s(self.sGrp)}, {s(self.sGrp)}, {s(T+1)}")
            k(f"s_lshl_b32 {s(self.sTok0)}, {s(self.sTB)}, 8")

    def make_tag(self):
        k = self.k
        k(f"s_mul_i32 {s(self.sTag)}, {s(self.sEp)}, 0x9E3779B1\ns_add_u32 {s(self.sTag)}, {s(self.sTag)}, 0x7F4A7C15")

    def phaseR_issue(self):
        k = self.k; T = self.sT
        self.sTokR = self.sget(name="tokR")
        k(f"s_lshl_b32 {s(T)}, {s(self.sB)}, 5\ns_add_u32 {s(T)}, {s(T)}, {s(self.sSlot)}\ns_lshl_b32 {s(T)}, {s(T)}, 3")
        k(f"s_lshl_b32 {s(T+1)}, {s(self.sA)}, 9\ns_add_u32 {s(T)}, {s(T)}, {s(T+1)}\ns_add_u32 {s(self.sTokR)}, {s(T)}, {s(self.sWave)}")
        self.vRx = self.vget(5, name="Rx"); self.vRw = self.vget(5, name="Rw"); self.vRa = self.vget(name="Raddr")
        k(f"s_mul_i32 {s(T)}, {s(self.sTokR)}, 1280\nv_lshlrev_b32 v{self.vRa}, 2, v{self.vL}")
        for j in range(5): k(f"buffer_load_dword v{self.vRx+j}, v{self.vRa}, {s(self.rX,4)}, {s(T)} offen offset:{256*j}")
        self.srd(self.rT, self.pWR, 1280)
        for j in range(5): k(f"buffer_load_dword v{self.vRw+j}, v{self.vRa}, {s(self.rT,4)}, 0 offen offset:{256*j}")

    def phaseR_compute(self):
        k = self.k; T = self.sT; sm = self.sMaskHi
        self.make_tag()
        x = self.vget(10, name="Rxf"); w = self.vget(10, name="Rwf"); t = self.vget(4, name="Rt")
        for j in range(5): k(f"v_lshlrev_b32 v{x+2*j}, 16, v{self.vRx+j}\nv_and_b32 v{x+2*j+1}, {s(sm)}, v{self.vRx+j}")
        for j in range(5): k(f"v_lshlrev_b32 v{w+2*j}, 16, v{self.vRw+j}\nv_and_b32 v{w+2*j+1}, {s(sm)}, v{self.vRw+j}")
        k(f"v_add_f32 v{t}, v{x}, v{x+1}")
        for j in range(2, 10): k(f"v_add_f32 v{t}, v{t}, v{x+j}")
        wave_sum(k, [t])
        k(f"v_mul_f32 v{t}, 0x3acccccd, v{t}\nv_readlane_b32 {s(T)}, v{t}, 63")
        for j in range(10): k(f"v_subrev_f32 v{x+j}, {s(T)}, v{x+j}")
        k(f"v_mul_f32 v{t+1}, v{x}, v{x}\nv_mul_f32 v{t+2}, v{x}, v{w}")
        for j in range(1, 10): k(f"v_fmac_f32 v{t+1}, v{x+j}, v{x+j}\nv_fmac_f32 v{t+2}, v{x+j}, v{w+j}")
        wave_sum(k, [t+1, t+2])
        k(f"v_mul_f32 v{t+1}, 0x3acccccd, v{t+1}\nv_add_f32 v{t+1}, 0x3727c5ac, v{t+1}\nv_rsq_f32 v{t+1}, v{t+1}\nv_mul_f32 v{t+2}, v{t+2}, v{t+1}")
        k(f"v_readlane_b32 {s(T+1)}, v{t+1}, 63\nv_readlane_b32 {s(T+2)}, v{t+2}, 63")
        rec = self.vget(4, 4, "rec"); ad = t + 3
        k(f"v_mov_b32 v{rec}, {s(T)}\nv_mov_b32 v{rec+1}, {s(self.sTag)}\nv_mov_b32 v{rec+2}, {s(T+1)}\nv_mov_b32 v{rec+3}, {s(self.sTag)}")
        k(f"s_lshl_b32 {s(T+3)}, {s(self.sTokR)}, 4\ns_add_u32 {s(T+3)}, {s(T+3)}, {WS_STATS}")
        k(f"s_ashr_i32 {s(T+4)}, {s(T+2)}, 31\ns_or_b32 {s(T+4)}, {s(T+4)}, 0x80000000\ns_xor_b32 {s(T+4)}, {s(T+4)}, {s(T+2)}")
        k(f"s_and_b32 {s(T+4)}, {s(T+4)}, 0xfffff800\ns_sub_u32 {s(T+5)}, 2047, {s(self.sTokR)}\ns_or_b32 {s(T+4)}, {s(T+4)}, {s(T+5)}")
        k(f"s_lshl_b32 {s(T+5)}, {s(self.sWave)}, 2\ns_add_u32 {s(T+5)}, {s(T+5)}, {L_RC}")
        k(f"v_mov_b32 v{t}, {s(T+4)}\nv_mov_b32 v{t+1}, {s(T+5)}\nv_mov_b32 v{ad}, 0")
        with self.lane0():
            k(f"buffer_store_dwordx4 {v(rec,4)}, v{ad}, {s(self.rWS,4)}, {s(T+3)} offen sc1")
            h = k(f"ds_write_b32 v{t+1}, v{t}")
        k.wait(h)
        self.vfree((x, 10), (w, 10), (t, 4), (rec, 4), (self.vRx, 5), (self.vRw, 5), (self.vRa, 1))

    def phaseR_publish(self):
        k = self.k; T = self.sT
        t = self.vget(4, 2, "Rp")
        lab = k.newlabel("nocand")
        k(f"s_cmp_lg_u32 {s(self.sWave)}, 0\ns_cbranch_scc1 {lab}")
        with k.cond():
            k(f"v_and_b32 v{t}, 7, v{self.vL}\nv_lshlrev_b32 v{t}, 2, v{t}\nv_add_u32 v{t}, {L_RC}, v{t}\nds_read_b32 v{t+2}, v{t}")
            for st in ("row_shr:1", "row_shr:2", "row_shr:4"):
                k(f"v_max_u32_dpp v{t+2}, v{t+2}, v{t+2} {st} row_mask:0xf bank_mask:0xf bound_ctrl:0")
            k(f"v_readlane_b32 {s(T)}, v{t+2}, 7\ns_lshl_b32 {s(T+1)}, s2, 3\ns_add_u32 {s(T+1)}, {s(T+1)}, {WS_CAND}")
            k(f"v_mov_b32 v{t}, {s(T)}\nv_mov_b32 v{t+1}, {s(self.sTag)}\nv_mov_b32 v{t+2}, 0")
            with self.lane0():
                k(f"buffer_store_dwordx2 {v(t,2)}, v{t+2}, {s(self.rWS,4)}, {s(T+1)} offen sc1")
        k.label(lab)
        self.V.free(t, 4)

    def h_setup(self, kv):
        k = self.k; T = self.sT; L = self.vL
        self.sH = self.sget(name="hw"); self.sBX = self.sget(name="bx"); self.sBW = self.sget(name="bw")
        k(f"s_sub_u32 {s(self.sH)}, {s(self.sWave)}, 8")
        hw = self.sH
        if kv: k(f"s_and_b32 {s(T)}, {s(self.sGrp)}, 3\ns_mul_i32 {s(T)}, {s(T)}, 3\ns_add_u32 {s(T)}, {s(T)}, {s(self.sTB)}")
        else:  k(f"s_and_b32 {s(T)}, {s(self.sGrp)}, 7\ns_mul_i32 {s(T)}, {s(T)}, 7\ns_mul_i32 {s(T+1)}, {s(self.sTB)}, 5\ns_add_u32 {s(T)}, {s(T)}, {s(T+1)}\ns_add_u32 {s(T)}, {s(T)}, 5")
        k(f"s_mul_hi_u32 {s(T+1)}, {s(T)}, {magic(10)}\ns_mul_i32 {s(T+1)}, {s(T+1)}, 10\ns_sub_u32 {s(self.sCC)}, {s(T)}, {s(T+1)}")
        t = self.vget(6, name="hs")
        nx = 4 if kv else 8
        self.vXd = self.vget(nx, name="Xdma")
        k(f"v_lshrrev_b32 v{t}, 3, v{L}\ns_mul_i32 {s(T)}, {s(hw)}, {8*nx}\ns_add_u32 {s(T)}, {s(T)}, {s(self.sTok0)}\nv_add_u32 v{t}, {s(T)}, v{t}\nv_mul_u32_u24 v{t}, 1280, v{t}")
        for j in range(nx):
            k(f"v_lshrrev_b32 v{t+1}, 4, v{L}\nv_add_u32 v{t+1}, {(4*j) & 7}, v{t+1}\nv_xor_b32 v{t+1}, v{t+1}, v{L}\nv_and_b32 v{t+1}, 7, v{t+1}")
            k(f"v_lshl_add_u32 v{self.vXd+j}, v{t+1}, 4, v{t}\nv_add_u32 v{self.vXd+j}, {j*8*1280}, v{self.vXd+j}")
        if kv:
            self.vWd = self.vget(5, name="Wdma")
            for j in range(5):
                k(f"s_mul_i32 {s(T)}, {s(hw)}, 320\ns_add_u32 {s(T)}, {s(T)}, {j*64}\nv_add_u32 v{t}, {s(T)}, v{L}")
                self.divmod_(t+1, t+2, t, 20, T+1); self.divmod_(t+3, t+4, t+2, 10, T+1)
                k(f"v_mul_u32_u24 v{t+1}, 3840, v{t+1}\nv_mul_u32_u24 v{t+3}, 80, v{t+3}\nv_add_u32 v{t+1}, v{t+1}, v{t+3}")
                k(f"v_and_b32 v{t+3}, 3, v{t+4}\nv_lshrrev_b32 v{t+5}, 1, v{t+3}\nv_add_u32 v{t+3}, v{t+3}, v{t+5}")
                k(f"v_cmp_gt_u32 vcc, 8, v{t+4}\nv_cndmask_b32 v{t+3}, 2, v{t+3}, vcc\nv_lshl_add_u32 v{t+1}, v{t+3}, 4, v{t+1}")
                k(f"v_bfe_u32 v{t+3}, v{t+4}, 2, 1\nv_cmp_eq_u32 vcc, 9, v{t+4}\nv_cndmask_b32 v{t+3}, v{t+3}, 1, vcc")
                k(f"v_mul_u32_u24 v{t+3}, 1280, v{t+3}\ns_mul_i32 {s(T)}, {s(self.sGrp)}, 160\ns_add_u32 {s(T)}, {s(T)}, 1280\nv_add3_u32 v{self.vWd+j}, v{t+1}, v{t+3}, {s(T)}")
        else:
            self.vWd = self.vget(2, name="Wdma")
            for j in range(2):
                k(f"s_lshl_b32 {s(T)}, {s(hw)}, 6\ns_add_u32 {s(T)}, {s(T)}, {256*j}\nv_add_u32 v{t}, {s(T)}, v{L}")
                self.divmod_(t+1, t+2, t, 5, T+1)
                k(f"v_lshrrev_b32 v{t+3}, 1, v{t+2}\nv_add_u32 v{t+3}, v{t+2}, v{t+3}\nv_cmp_gt_u32 vcc, 4, v{t+2}\nv_cndmask_b32 v{t+3}, 2, v{t+3}, vcc")
                k(f"v_and_b32 v{t+4}, 48, v{t+1}\nv_and_b32 v{t+5}, 3, v{t+1}\nv_lshl_or_b32 v{t+4}, v{t+5}, 2, v{t+4}\nv_bfe_u32 v{t+5}, v{t+1}, 2, 2\nv_or_b32 v{t+4}, v{t+4}, v{t+5}")
                k(f"v_mul_u32_u24 v{t+4}, 3840, v{t+4}\nv_lshl_add_u32 v{t+4}, v{t+3}, 4, v{t+4}\ns_mul_i32 {s(T)}, {s(self.sGrp)}, 80\nv_add_u32 v{self.vWd+j}, {s(T)}, v{t+4}")
        self.V.free(t, 6)

    def h_pieces(self, kv):
        if kv:
            P = [("X", self.vXd+j, KV_WST + j*1024, False) for j in range(4)] + [("W", self.vWd+j, j*1024, False) for j in range(5)]
        else:
            P = [("X", self.vXd+j, Q_WST + j*1024, False) for j in range(8)] + [("W", self.vWd, 0, False), ("W", self.vWd+1, 4096, True)]
        return P

    def h_chunk_begin(self, kv):
        k = self.k; hw = self.sH
        k(f"s_mul_i32 {s(self.sOffW)}, {s(self.sCC)}, {64*3840}\ns_lshl_b32 {s(self.sOffX)}, {s(self.sCC)}, 7")
        k(f"s_mul_i32 {s(self.sBX)}, {s(hw)}, {4096 if kv else 8192}\ns_add_u32 {s(self.sBX)}, {s(self.sBX)}, {s(self.sStgN)}")
        k(f"s_mul_i32 {s(self.sBW)}, {s(hw)}, {5120 if kv else 1024}\ns_add_u32 {s(self.sBW)}, {s(self.sBW)}, {s(self.sStgN)}")
    def h_piece(self, kv, pc):
        k = self.k
        kind, vg, off, cond = pc
        base, srd, so = (self.sBX, self.rX, self.sOffX) if kind == "X" else (self.sBW, self.rW, self.sOffW)
        if cond:
            lab = k.newlabel("skip")
            k(f"s_cmp_lg_u32 {s(self.sH)}, 0\ns_cbranch_scc1 {lab}")
            with k.cond():
                k(f"s_add_u32 m0, {s(base)}, {off}\nbuffer_load_dwordx4 v{vg}, {s(srd,4)}, {s(so)} offen lds")
            k.label(lab)
        else:
            k(f"s_add_u32 m0, {s(base)}, {off}\nbuffer_load_dwordx4 v{vg}, {s(srd,4)}, {s(so)} offen lds")
    def h_chunk_end(self, kv):
        k = self.k; stage = KV_STAGE if kv else Q_STAGE
        k(f"s_add_u32 {s(self.sCC)}, {s(self.sCC)}, 1\ns_cmp_eq_u32 {s(self.sCC)}, 10\ns_cselect_b32 {s(self.sCC)}, 0, {s(self.sCC)}")
        k(f"s_add_u32 {s(self.sStgN)}, {s(self.sStgN)}, {stage}\ns_cmp_eq_u32 {s(self.sStgN)}, {4*stage}\ns_cselect_b32 {s(self.sStgN)}, 0, {s(self.sStgN)}")

    def h_misc(self, kv):
        k = self.k; T = self.sT; hw = self.sH
        t = self.vget(5, 4, "misc")
        self.srd(self.rT, self.pPHI, 25600)
        lab = k.newlabel("nophi")
        if not kv: k(f"s_cmp_ge_u32 {s(hw)}, 2\ns_cbranch_scc1 {lab}")
        with k.cond():
            k(f"s_mul_i32 {s(T)}, {s(self.sGrp)}, {3200 if kv else 1600}\ns_lshl_b32 {s(T+1)}, {s(hw)}, 10\ns_add_u32 {s(T)}, {s(T)}, {s(T+1)}")
            k(f"v_lshlrev_b32 v{t+4}, 4, v{self.vL}\ns_add_u32 m0, {s(T+1)}, {L_WPHI}\nbuffer_load_dwordx4 v{t+4}, {s(self.rT,4)}, {s(T)} offen lds")
        k.label(lab)
        lab = k.newlabel("nozero")
        k(f"s_cmp_lg_u32 {s(hw)}, 3\ns_cbranch_scc1 {lab}")
        with k.cond():
            for r in range(4): k(f"v_mov_b32 v{t+r}, 0")
            k(f"v_lshlrev_b32 v{t+4}, 4, v{self.vL}\nv_add_u32 v{t+4}, {L_ZERO}, v{t+4}")
            k.wait(k(f"ds_write_b128 v{t+4}, {v(t,4)}"))
        k.label(lab)
        self.V.free(t, 5)

    def h_loop(self, kv, nm):
        k = self.k; T = self.sT; L = self.vL; hw = self.sH
        stage = KV_STAGE if kv else Q_STAGE
        pcs = self.h_pieces(kv)
        P = sum(1 for p in pcs if not p[3])
        k(f"s_mov_b32 {s(self.sStgN)}, 0")
        for c in range(4):
            self.h_chunk_begin(kv)
            for pc in pcs: self.h_piece(kv, pc)
            self.h_chunk_end(kv)
        self.make_tag()
        nch = 20 if kv else 5
        rowb, nrd, rstep = (320 if kv else 80), 6, 12
        self.vCa = self.vget(name="csaddr"); slot = self.vget(name="csslot"); acc = self.vget(8, name="csacc")
        rd = self.vget(24, 4, "csrd"); t = self.vget(2, name="cst"); u = self.vget(name="csu")
        self.divmod_(slot, u, L, nch, T)
        k(f"s_mul_i32 {s(T)}, {s(hw)}, 3\nv_add_u32 v{slot}, {s(T)}, v{slot}")
        k(f"v_mul_u32_u24 v{t}, {rowb}, v{slot}\nv_lshl_add_u32 v{self.vCa}, v{u}, 4, v{t}")
        for r in range(8): k(f"v_mov_b32 v{acc+r}, 0")
        self.sCm = self.sget(4, 2, "csmask")
        k(f"v_cmp_gt_u32 vcc, {3*nch}, v{L}\ns_mov_b64 {s(self.sCm,2)}, vcc")
        k(f"v_cmp_gt_u32 vcc, {64 - rstep*(nrd-1)}, v{slot}\ns_and_b64 {s(self.sCm+2,2)}, vcc, {s(self.sCm,2)}")
        if self.o.get("clkprobe"):
            self.vProbe = self.vget(2, name="probe")
            k(f"v_mov_b32 v{self.vProbe}, 0\nv_mov_b32 v{self.vProbe+1}, 0")
        self.barrier("Br")
        k(f"s_mov_b32 {s(self.sC)}, 0\ns_mov_b32 {s(self.sStg)}, 0")
        k.wait_all(vm=False)
        nocs = self.o.get("nocs")
        with k.manual():
            k.label(f"L_hloop_{nm}")
            l0, l1, l2, go = k.newlabel("hw0"), k.newlabel("hw1"), k.newlabel("hw2"), k.newlabel("hgo")
            k(f"s_cmp_eq_u32 {s(self.sC)}, 0\ns_cbranch_scc1 {l0}\ns_cmp_eq_u32 {s(self.sC)}, 1\ns_cbranch_scc1 {l1}\ns_cmp_eq_u32 {s(self.sC)}, 9\ns_cbranch_scc1 {l2}")
            k(f"s_waitcnt vmcnt({P})\ns_branch {go}")
            k.label(l0); k(f"s_waitcnt vmcnt({3*P})\ns_branch {go}")
            k.label(l1); k(f"s_waitcnt vmcnt({2*P})\ns_branch {go}")
            k.label(l2); k("s_waitcnt vmcnt(0)")
            k.label(go); k("s_barrier   ; B_c")
            if self.o.get("clkprobe"):
                k(f"s_memrealtime {s(self.sStamp+12,2)}\ns_memtime {s(self.sStamp+14,2)}\ns_waitcnt lgkmcnt(0)")
                k(f"s_mov_b32 m0, {s(self.sC)}\nv_writelane_b32 v{self.vProbe}, {s(self.sStamp+12)}, m0\nv_writelane_b32 v{self.vProbe+1}, {s(self.sStamp+14)}, m0")
            nodma, join = k.newlabel("hnodma"), k.newlabel("hjoin")
            def cs_acc(i):
                if nocs: return
                k(f"s_waitcnt lgkmcnt({nrd-1-i})")
                if i == nrd-1: k(f"s_mov_b64 exec, {s(self.sCm+2,2)}")
                for r in range(4):
                    src = rd + 4*i + r
                    k(f"v_lshlrev_b32 v{t}, 16, v{src}\nv_and_b32 v{t+1}, {s(self.sMaskHi)}, v{src}")
                    k(f"v_add_f32 v{acc+2*r}, v{acc+2*r}, v{t}\nv_add_f32 v{acc+2*r+1}, v{acc+2*r+1}, v{t+1}")
                if i == nrd-1: k("s_mov_b64 exec, -1")
            if not nocs:
                for i in range(nrd): k(f"ds_read_b128 {v(rd+4*i,4)}, v{self.vCa} offset:{i*rstep*rowb}")
            k(f"s_cmp_lt_u32 {s(self.sC)}, 2\ns_cbranch_scc1 {nodma}\ns_cmp_gt_u32 {s(self.sC)}, {0 if self.o.get('nodma') else 7}\ns_cbranch_scc1 {nodma}")
            self.h_chunk_begin(kv)
            for j, pc in enumerate(pcs):
                self.h_piece(kv, pc)
                if 1 <= j <= nrd: cs_acc(j-1)
            self.h_chunk_end(kv)
            k(f"s_branch {join}")
            k.label(nodma)
            for i in range(nrd): cs_acc(i)
            k.label(join)
            k(f"s_add_u32 {s(self.sStg)}, {s(self.sStg)}, {stage}\ns_cmp_eq_u32 {s(self.sStg)}, {4*stage}")
            k(f"s_cselect_b32 {s(self.sStg)}, 0, {s(self.sStg)}\ns_mov_b32 {s(self.sDel)}, {stage}\ns_cselect_b32 {s(self.sDel)}, {(-3*stage) & 0xffffffff}, {s(self.sDel)}")
            k(f"v_add_u32 v{self.vCa}, {s(self.sDel)}, v{self.vCa}")
            k(f"s_add_u32 {s(self.sC)}, {s(self.sC)}, 1\ns_cmp_lt_u32 {s(self.sC)}, 10\ns_cbranch_scc1 L_hloop_{nm}")
        self.bars += [f"B{c}" for c in range(10)]
        k.sync_state()
        base = KV_CS if kv else Q_CS
        k(f"v_lshlrev_b32 v{t}, 9, v{u}\nv_lshl_add_u32 v{t}, v{slot}, 2, v{t}\nv_add_u32 v{t}, {base}, v{t}")
        k(f"s_mov_b64 exec, {s(self.sCm,2)}")
        hs = [k(f"ds_write_b32 v{t}, v{acc+e} offset:{64*e}") for e in range(8)]
        k("s_mov_b64 exec, -1")
        k.wait(hs[-1])
        self.vfree((self.vCa, 1), (slot, 1), (acc, 8), (rd, 24), (t, 2), (u, 1), (self.vXd, 4 if kv else 8), (self.vWd, 5 if kv else 2))

    def c_setup(self, kv):
        k = self.k; T = self.sT; L = self.vL; w = self.sWave
        self.vXa = self.vget(4, name="Xaddr"); self.vWa = self.vget(2, name="Waddr")
        t = self.vget(6, name="setup")
        wst = KV_WST if kv else Q_WST
        if kv: k(f"s_and_b32 {s(T)}, {s(w)}, 3")
        else:  k(f"s_mov_b32 {s(T)}, {s(w)}")
        k(f"s_lshl_b32 {s(T)}, {s(T)}, 12\ns_add_u32 {s(T)}, {s(T)}, {wst}")
        k(f"v_and_b32 v{t}, 31, v{L}\nv_lshlrev_b32 v{t+1}, 7, v{t}\nv_add_u32 v{t+1}, {s(T)}, v{t+1}")
        k(f"v_bfe_u32 v{t+2}, v{L}, 1, 3\nv_lshrrev_b32 v{t+3}, 5, v{L}")
        for q in range(4):
            k(f"v_or_b32 v{t+4}, {2*q}, v{t+3}\nv_xor_b32 v{t+4}, v{t+4}, v{t+2}\nv_lshl_add_u32 v{self.vXa+q}, v{t+4}, 4, v{t+1}")
        k(f"v_bfe_u32 v{t}, v{L}, 4, 1\nv_and_b32 v{t+1}, 3, v{L}\nv_lshl_or_b32 v{t}, v{t}, 2, v{t+1}")
        k(f"v_lshrrev_b32 v{t+1}, 1, v{t}\nv_and_b32 v{t+2}, 1, v{t}")
        k(f"v_bfe_u32 v{t+3}, v{L}, 2, 2\nv_lshrrev_b32 v{t+4}, 5, v{L}")
        if kv:
            k(f"v_lshl_add_u32 v{t+3}, v{t+4}, 3, v{t+3}\nv_mul_u32_u24 v{t+3}, 320, v{t+3}")
            k(f"v_lshlrev_b32 v{t+5}, 5, v{t+2}\nv_lshl_add_u32 v{t+5}, v{t+1}, 3, v{t+5}")
            k(f"s_lshr_b32 {s(T)}, {s(w)}, 2\ns_mul_i32 {s(T)}, {s(T)}, 160\nv_add3_u32 v{self.vWa}, v{t+3}, v{t+5}, {s(T)}")
            k(f"v_and_b32 v{t+5}, 1, v{t+1}\nv_lshlrev_b32 v{t+5}, 4, v{t+5}\nv_lshl_add_u32 v{t+5}, v{t+2}, 3, v{t+5}")
            k(f"v_lshrrev_b32 v{t+1}, 1, v{t+1}\nv_mul_u32_u24 v{t+1}, 160, v{t+1}\nv_add_u32 v{t+5}, v{t+5}, v{t+1}\nv_add_u32 v{t+5}, 128, v{t+5}")
            k(f"v_add_u32 v{self.vWa+1}, v{t+3}, v{t+5}")
        else:
            k(f"v_lshlrev_b32 v{t+3}, 2, v{t+3}\nv_lshl_add_u32 v{t+3}, v{t+4}, 1, v{t+3}\nv_mul_u32_u24 v{t+3}, 80, v{t+3}")
            k(f"v_lshlrev_b32 v{t+5}, 5, v{t+2}\nv_lshl_add_u32 v{t+5}, v{t+1}, 3, v{t+5}\nv_add_u32 v{self.vWa}, v{t+3}, v{t+5}")
            k(f"v_lshlrev_b32 v{t+1}, 3, v{t+2}\nv_add_u32 v{t+1}, 64, v{t+1}\nv_add_u32 v{self.vWa+1}, v{t+3}, v{t+1}")
        self.V.free(t, 6)
        self.vSt = self.vget(4, 4, "stats"); self.vStA = self.vget(name="statsA")
        if kv: k(f"s_and_b32 {s(T)}, {s(w)}, 3")
        else:  k(f"s_mov_b32 {s(T)}, {s(w)}")
        k(f"s_lshl_b32 {s(T)}, {s(T)}, 5\ns_add_u32 {s(T)}, {s(T)}, {s(self.sTok0)}\ns_lshl_b32 {s(T)}, {s(T)}, 4\ns_add_u32 {s(T)}, {s(T)}, {WS_STATS}")
        k(f"v_and_b32 v{self.vStA}, 31, v{L}\nv_lshlrev_b32 v{self.vStA}, 4, v{self.vStA}\nv_add_u32 v{self.vStA}, {s(T)}, v{self.vStA}")

    def c_loop(self, kv, nt, nm):
        k = self.k
        stage = KV_STAGE if kv else Q_STAGE
        F = self.vF
        nread = 1 + 2*nt
        def reads(S_, q):
            if self.o.get("noreads"): return
            k(f"ds_read_b128 {v(F[S_],4)}, v{self.vXa+q}")
            for t in range(nt):
                for h in range(2):
                    if kv: a, off = (self.vWa, 5120*q + 1280*h + 64*t) if t < 2 else (self.vWa+1, 5120*q + 1280*h)
                    else:  a, off = (self.vWa + t, 1280*q + 80*h)
                    k(f"ds_read_b64_tr_b16 {v(F[S_]+4+4*t+2*h,2)}, v{a} offset:{off}")
        def mfmas(S_):
            for t in range(nt):
                if self.o.get("nomfma"): continue
                if self.o.get("q1") and not kv and t == 1: continue
                if self.o.get("m16"):
                    for z in range(2):
                        a_ = self.vAcc+16*t+4*z+8*S_
                        k(f"v_mfma_f32_16x16x32_bf16 {v(a_,4)}, {v(F[S_]+4+4*t,4)}, {v(F[S_],4)}, {v(a_,4)}")
                    continue
                k(f"v_mfma_f32_32x32x16_bf16 {v(self.vAcc+16*t,16)}, {v(F[S_]+4+4*t,4)}, {v(F[S_],4)}, {v(self.vAcc+16*t,16)}")
        def advance():
            k(f"s_add_u32 {s(self.sStg)}, {s(self.sStg)}, {stage}\ns_cmp_eq_u32 {s(self.sStg)}, {4*stage}")
            k(f"s_cselect_b32 {s(self.sStg)}, 0, {s(self.sStg)}\ns_mov_b32 {s(self.sDel)}, {stage}\ns_cselect_b32 {s(self.sDel)}, {(-3*stage) & 0xffffffff}, {s(self.sDel)}")
            for r in range(4): k(f"v_add_u32 v{self.vXa+r}, {s(self.sDel)}, v{self.vXa+r}")
            for r in range(2 if (nt == 3 or not kv) else 1): k(f"v_add_u32 v{self.vWa+r}, {s(self.sDel)}, v{self.vWa+r}")
        with k.manual():
            k(f"s_mov_b32 {s(self.sC)}, 0\ns_mov_b32 {s(self.sStg)}, 0")
            k("s_barrier   ; B0")
            reads(0, 0); reads(1, 1)
            k.label(f"L_cloop_{nm}")
            k(f"s_waitcnt lgkmcnt({nread})"); mfmas(0); reads(0, 2)
            k(f"s_waitcnt lgkmcnt({nread})"); mfmas(1); reads(1, 3)
            last = k.newlabel("last")
            k(f"s_cmp_eq_u32 {s(self.sC)}, 9\ns_cbranch_scc1 {last}")
            sl = k.newlabel("nostat")
            k(f"s_cmp_lg_u32 {s(self.sC)}, 6\ns_cbranch_scc1 {sl}")
            k(f"buffer_load_dwordx4 {v(self.vSt,4)}, v{self.vStA}, {s(self.rWS,4)}, 0 offen sc1")
            k.label(sl)
            k("s_barrier   ; B_c+1")
            advance()
            k(f"s_waitcnt lgkmcnt({nread})"); mfmas(0); reads(0, 0)
            k(f"s_waitcnt lgkmcnt({nread})"); mfmas(1); reads(1, 1)
            k(f"s_add_u32 {s(self.sC)}, {s(self.sC)}, 1\ns_branch L_cloop_{nm}")
            k.label(last)
            k(f"s_waitcnt lgkmcnt({nread})"); mfmas(0)
            k("s_waitcnt lgkmcnt(0)"); mfmas(1)
            k("s_waitcnt vmcnt(0)")
        k.sync_state()

    def stats_check(self):
        k = self.k; T = self.sT
        again, ok = k.newlabel("stat_again"), k.newlabel("stat_ok")
        with k.manual():
            k(f"s_mov_b32 {s(T+2)}, 0")
            k.label(again)
            k(f"v_cmp_ne_u32 vcc, {s(self.sTag)}, v{self.vSt+1}\nv_cmp_ne_u32 {s(T,2)}, {s(self.sTag)}, v{self.vSt+3}")
            k(f"s_nop 1\ns_or_b64 vcc, vcc, {s(T,2)}\ns_cbranch_vccz {ok}")
            k(f"s_add_u32 {s(T+2)}, {s(T+2)}, 1\ns_cmp_gt_u32 {s(T+2)}, {SPIN_MAX}\ns_cbranch_scc1 {ok}")
            k(f"buffer_load_dwordx4 {v(self.vSt,4)}, v{self.vStA}, {s(self.rWS,4)}, 0 offen sc1\ns_waitcnt vmcnt(0)\ns_branch {again}")
            k.label(ok)

    def c_meanfix(self, kv, p, nt_own):
        k = self.k; T = self.sT; w = self.sWave; L = self.vL
        nt = 3 if kv else 2
        t = self.vget(6, name="mf"); rd = self.vget(12, 4, "csrd"); ax = self.vget(4, 4, "Aext"); bx = self.vget(4, 4, "Bext")
        if kv and p == 1:
            k(f"s_and_b32 {s(T)}, {s(w)}, 3\ns_lshl_b32 {s(T)}, {s(T)}, 11\ns_add_u32 {s(T)}, {s(T)}, {KV_XCH}")
            k(f"v_lshlrev_b32 v{t}, 5, v{L}\nv_add_u32 v{t}, {s(T)}, v{t}")
            k(f"ds_read_b128 {v(self.vAcc+32,4)}, v{t}\nds_read_b128 {v(self.vAcc+36,4)}, v{t} offset:16")
            for r in range(8, 16): k(f"v_mov_b32 v{self.vAcc+32+r}, 0")
        self.stats_check()
        k(f"v_sub_f32 v{t+1}, 0, v{self.vSt}\nv_cvt_pk_bf16_f32 v{bx+1}, v{t+1}, 0\nv_lshlrev_b32 v{t+2}, 16, v{bx+1}")
        k(f"v_sub_f32 v{t+2}, v{t+1}, v{t+2}\nv_cvt_pk_bf16_f32 v{bx}, v{t+1}, v{t+2}\nv_mov_b32 v{bx+2}, 0\nv_mov_b32 v{bx+3}, 0")
        k(f"v_bfe_u32 v{t}, v{L}, 3, 2\nv_bfe_u32 v{t+1}, v{L}, 2, 1\nv_and_b32 v{t+2}, 3, v{L}")
        base = KV_CS if kv else Q_CS
        A01 = self.vget(1, name="csA"); A2 = self.vget(1, name="csB")
        k(f"v_lshlrev_b32 v{t+3}, 4, v{t+1}\nv_lshl_add_u32 v{t+3}, v{t}, 2, v{t+3}\nv_add_u32 v{t+3}, v{t+3}, v{t+2}")
        if kv:
            k(f"v_add_u32 v{t+3}, {80*p}, v{t+3}\nv_lshlrev_b32 v{A01}, 6, v{t+3}\nv_add_u32 v{A01}, {base}, v{A01}")
            k(f"v_and_b32 v{t+4}, 1, v{t}\nv_lshlrev_b32 v{t+4}, 3, v{t+4}\nv_lshl_add_u32 v{t+4}, v{t+1}, 2, v{t+4}\nv_add_u32 v{t+4}, v{t+4}, v{t+2}")
            if p == 0: k(f"v_lshrrev_b32 v{t+5}, 1, v{t}\nv_mul_u32_u24 v{t+5}, 80, v{t+5}\nv_add3_u32 v{t+4}, v{t+4}, v{t+5}, 64")
            else:      k(f"v_add_u32 v{t+4}, {64+80}, v{t+4}")
            k(f"v_lshlrev_b32 v{A2}, 6, v{t+4}\nv_add_u32 v{A2}, {base}, v{A2}")
        else:
            k(f"v_lshlrev_b32 v{A01}, 6, v{t+3}\nv_add_u32 v{A01}, {base}, v{A01}")
            k(f"v_lshlrev_b32 v{t+4}, 2, v{t+1}\nv_add3_u32 v{t+4}, v{t+4}, v{t+2}, 32\nv_lshlrev_b32 v{A2}, 6, v{t+4}\nv_add_u32 v{A2}, {base}, v{A2}")
        k(f"v_cmp_gt_u32 vcc, 32, v{L}")
        for tt in range(nt):
            if kv: a, off = (A01, 32*64*tt) if tt < 2 else (A2, 0)
            else:  a, off = (A01, 0) if tt == 0 else (A2, 0)
            for q in range(3): k(f"ds_read_b128 {v(rd+4*q,4)}, v{a} offset:{off + 16*q}")
            k(f"v_add_f32 v{t+1}, v{rd}, v{rd+1}")
            for j in range(2, 12): k(f"v_add_f32 v{t+1}, v{t+1}, v{rd+j}")
            k(f"v_cndmask_b32 v{t+1}, 0, v{t+1}, vcc")
            k(f"v_cvt_pk_bf16_f32 v{ax}, v{t+1}, v{t+1}\nv_lshlrev_b32 v{t+2}, 16, v{ax}\nv_sub_f32 v{t+2}, v{t+1}, v{t+2}")
            k(f"v_cvt_pk_bf16_f32 v{ax+1}, v{t+2}, 0\nv_mov_b32 v{ax+2}, 0\nv_mov_b32 v{ax+3}, 0")
            k(f"v_mfma_f32_32x32x16_bf16 {v(self.vAcc+16*tt,16)}, {v(ax,4)}, {v(bx,4)}, {v(self.vAcc+16*tt,16)}")
        self.vfree((t, 6), (rd, 12), (ax, 4), (bx, 4), (A01, 1), (A2, 1))

    def phi_frags(self, kv):
        k = self.k; T = self.sT; w = self.sWave; L = self.vL
        t = self.vget(8, name="pf"); A = self.vget(24, 4, "Aphi")
        k(f"v_bfe_u32 v{t}, v{L}, 4, 1\nv_and_b32 v{t+1}, 3, v{L}\nv_lshl_or_b32 v{t}, v{t}, 2, v{t+1}")
        k(f"v_lshrrev_b32 v{t+1}, 1, v{t}\nv_and_b32 v{t+2}, 1, v{t}")
        k(f"v_bfe_u32 v{t+3}, v{L}, 2, 2\nv_lshrrev_b32 v{t+4}, 5, v{L}")
        if kv: k(f"s_lshr_b32 {s(T)}, {s(w)}, 2\ns_mul_i32 {s(T)}, {s(T)}, 1600\ns_add_u32 {s(T)}, {s(T)}, {L_WPHI}")
        else:  k(f"s_mov_b32 {s(T)}, {L_WPHI}")
        k(f"v_mul_u32_u24 v{t+5}, 800, v{t+2}\nv_add_u32 v{t+5}, {s(T)}, v{t+5}")
        k(f"v_lshl_add_u32 v{t+6}, v{t+2}, 2, v{t+3}\nv_mul_u32_u24 v{t+6}, 40, v{t+6}\nv_add_u32 v{t+6}, v{t+5}, v{t+6}")
        k(f"v_xor_b32 v{t+7}, 1, v{t+2}\nv_lshl_add_u32 v{t+7}, v{t+7}, 4, v{t+3}\nv_mul_u32_u24 v{t+7}, 40, v{t+7}\nv_add_u32 v{t+7}, v{t+5}, v{t+7}")
        a = self.vget(4, name="pfa")
        k(f"v_lshl_add_u32 v{a}, v{t+1}, 3, v{t+6}\nv_lshl_add_u32 v{a+2}, v{t+1}, 3, v{t+7}")
        k(f"v_add_u32 v{a+1}, 32, v{t+6}\nv_add_u32 v{a+3}, 32, v{t+7}")
        k(f"v_mov_b32 v{t+5}, {L_ZERO}\nv_cmp_eq_u32 vcc, v{t+2}, v{t+4}")
        k(f"v_cndmask_b32 v{a}, v{t+5}, v{a}, vcc\nv_cndmask_b32 v{a+2}, v{t+5}, v{a+2}, vcc")
        k(f"v_cmp_eq_u32 {s(T,2)}, 0, v{t+1}\ns_nop 1\ns_and_b64 vcc, vcc, {s(T,2)}")
        k(f"v_cndmask_b32 v{a+1}, v{t+5}, v{a+1}, vcc\nv_cndmask_b32 v{a+3}, v{t+5}, v{a+3}, vcc")
        for tile in range(2):
            for st in range(2):
                for h in range(2):
                    k(f"ds_read_b64_tr_b16 {v(A+12*tile+4*st+2*h,2)}, v{a+tile} offset:{320*st+160*h}")
            k(f"ds_read_b64_tr_b16 {v(A+12*tile+8,2)}, v{a+2+tile}")
            k(f"v_mov_b32 v{A+12*tile+10}, 0\nv_mov_b32 v{A+12*tile+11}, 0")
        self.V.free(t, 8); self.V.free(a, 4)
        return A

    def softmax_path(self, kv, A):
        k = self.k; T = self.sT
        acc = self.vAcc
        left = acc + 32 if kv else acc + 16
        raw = [acc + i for i in range(16)] + [left + i for i in range(4)]
        B = self.vget(12, 4, "Braw")
        for j in range(10): k(f"v_cvt_pk_bf16_f32 v{B+j}, v{raw[2*j]}, v{raw[2*j+1]}")
        k(f"v_mov_b32 v{B+10}, 0\nv_mov_b32 v{B+11}, 0")
        Pm = self.vget(32, 4, "P")
        for tile in range(2):
            for st in range(3):
                c = "0" if st == 0 else v(Pm+16*tile, 16)
                k(f"v_mfma_f32_32x32x16_bf16 {v(Pm+16*tile,16)}, {v(A+12*tile+4*st,4)}, {v(B+4*st,4)}, {c}")
        self.V.free(B, 12); self.V.free(A, 24)
        p = [Pm + i for i in range(16)] + [Pm + 16 + i for i in range(4)]
        t = self.vget(8, name="sm"); E = self.vget(20, 2, "E")
        mx, mn, c, s1, s2 = t, t+1, t+2, t+3, t+4
        k(f"v_mul_f32 v{c}, 0x3fb8aa3b, v{self.vSt+2}")
        k(f"v_max3_f32 v{mx}, v{p[0]}, v{p[1]}, v{p[2]}\nv_min3_f32 v{mn}, v{p[0]}, v{p[1]}, v{p[2]}")
        for j in range(3, 19, 2):
            k(f"v_max3_f32 v{mx}, v{mx}, v{p[j]}, v{p[j+1]}\nv_min3_f32 v{mn}, v{mn}, v{p[j]}, v{p[j+1]}")
        k(f"v_max_f32 v{mx}, v{mx}, v{p[19]}\nv_min_f32 v{mn}, v{mn}, v{p[19]}")
        k(f"v_mul_f32 v{mx}, v{mx}, v{c}\nv_mul_f32 v{mn}, v{mn}, v{c}")
        for j in range(20):
            k(f"v_fma_f32 v{E+j}, v{p[j]}, v{c}, -v{mx}")
            k(f"v_fma_f32 v{p[j]}, -v{p[j]}, v{c}, v{mn}")
        for j in range(20):
            k(f"v_exp_f32 v{E+j}, v{E+j}")
            k(f"v_exp_f32 v{p[j]}, v{p[j]}")
        k(f"v_add_f32 v{s1}, v{E}, v{E+1}\nv_add_f32 v{s2}, v{p[0]}, v{p[1]}")
        for j in range(2, 20):
            k(f"v_add_f32 v{s1}, v{s1}, v{E+j}\nv_add_f32 v{s2}, v{s2}, v{p[j]}")
        k(f"v_rcp_f32 v{s1}, v{s1}\nv_rcp_f32 v{s2}, v{s2}")
        if kv: k(f"v_mul_f32 v{s1}, v{s1}, v{self.vSt+2}\nv_mul_f32 v{s2}, v{s2}, v{self.vSt+2}")
        PH = self.vget(20, 4, "PH")
        for j in range(0, 20, 2):
            k(f"v_mul_f32 v{E+j}, v{E+j}, v{s1}\nv_mul_f32 v{E+j+1}, v{E+j+1}, v{s1}\nv_cvt_pk_bf16_f32 v{PH+j//2}, v{E+j}, v{E+j+1}")
        for j in range(0, 20, 2):
            k(f"v_mul_f32 v{p[j]}, v{p[j]}, v{s2}\nv_mul_f32 v{p[j+1]}, v{p[j+1]}, v{s2}\nv_cvt_pk_bf16_f32 v{PH+10+j//2}, v{p[j]}, v{p[j+1]}")
        self.V.free(Pm, 32); self.V.free(t, 8); self.V.free(E, 20)
        return PH

    def kv_finish(self, PH):
        k = self.k; T = self.sT; w = self.sWave; L = self.vL
        acc = self.vAcc
        t = self.vget(6, name="kvf"); VB = self.vget(12, 4, "Vpk")
        vr = [acc + 16 + i for i in range(16)] + [acc + 36 + i for i in range(4)]
        for j in range(10): k(f"v_cvt_pk_bf16_f32 v{VB+j}, v{vr[2*j]}, v{vr[2*j+1]}")
        k(f"v_rcp_f32 v{t}, v{self.vSt+2}\nv_cvt_pk_bf16_f32 v{VB+10}, v{t}, 0\nv_mov_b32 v{VB+11}, 0")
        k(f"s_and_b32 {s(T)}, {s(w)}, 3\ns_lshl_b32 {s(T)}, {s(T)}, 5\ns_lshr_b32 {s(T+1)}, {s(w)}, 2\ns_lshl_b32 {s(T+1)}, {s(T+1)}, 1")
        k(f"v_and_b32 v{t}, 31, v{L}\nv_add_u32 v{t}, {s(T)}, v{t}\nv_lshrrev_b32 v{t+1}, 5, v{L}\nv_add_u32 v{t+1}, {s(T+1)}, v{t+1}")
        k(f"v_mul_u32_u24 v{t+2}, {PHI_STR}, v{t}\nv_mul_u32_u24 v{t+3}, 80, v{t+1}\nv_add_u32 v{t+2}, v{t+2}, v{t+3}")
        k(f"v_mul_u32_u24 v{t+4}, {VB_STR}, v{t}\nv_mul_u32_u24 v{t+3}, 48, v{t+1}\nv_add_u32 v{t+4}, v{t+4}, v{t+3}")
        hs = []
        for j in range(5): hs.append(k(f"ds_write_b128 v{t+2}, {v(PH+4*j,4)} offset:{L_PHI+16*j}"))
        for j in range(3): hs.append(k(f"ds_write_b128 v{t+4}, {v(VB+4*j,4)} offset:{L_VB+16*j}"))
        k.wait(hs[-1])
        self.barrier()
        self.V.free(PH, 20); self.V.free(VB, 12); self.V.free(acc, 48)
        k(f"v_lshrrev_b32 v{t}, 5, v{L}\nv_lshlrev_b32 v{t}, 4, v{t}\nv_bfe_u32 v{t+1}, v{L}, 4, 1\nv_lshl_add_u32 v{t}, v{t+1}, 2, v{t}\nv_bfe_u32 v{t+1}, v{L}, 2, 2\nv_add_u32 v{t}, v{t}, v{t+1}")
        k(f"v_and_b32 v{t+1}, 3, v{L}\nv_lshlrev_b32 v{t+1}, 3, v{t+1}")
        k(f"s_lshr_b32 {s(T)}, {s(w)}, 1\ns_and_b32 {s(T+1)}, {s(w)}, 1")
        k(f"s_mul_i32 {s(T+2)}, {s(T)}, 80\ns_add_u32 {s(T+2)}, {s(T+2)}, {L_PHI}\nv_mul_u32_u24 v{t+2}, {PHI_STR}, v{t}\nv_add3_u32 v{t+2}, v{t+2}, v{t+1}, {s(T+2)}")
        k(f"s_mul_i32 {s(T+2)}, {s(T)}, 48\ns_lshl_b32 {s(T+3)}, {s(T+1)}, 5\ns_add_u32 {s(T+2)}, {s(T+2)}, {s(T+3)}\ns_add_u32 {s(T+2)}, {s(T+2)}, {L_VB}")
        k(f"v_mul_u32_u24 v{t+3}, {VB_STR}, v{t}\nv_add3_u32 v{t+3}, v{t+3}, v{t+1}, {s(T+2)}")
        D = self.vget(12, 4, "kvD"); Fa = [self.vget(16, 4, f"kvF{i}") for i in range(2)]
        def rd(S_, ks):
            for mt in range(3):
                for h in range(2):
                    k(f"ds_read_b64_tr_b16 {v(Fa[S_]+4*mt+2*h,2)}, v{t+2} offset:{(32*ks+8*h)*PHI_STR + 32*mt}")
            for h in range(2):
                k(f"ds_read_b64_tr_b16 {v(Fa[S_]+12+2*h,2)}, v{t+3} offset:{(32*ks+8*h)*VB_STR}")
        rd(0, 0)
        for ks in range(4):
            if ks < 3: rd((ks+1) & 1, ks+1)
            S_ = ks & 1
            for mt in range(3):
                c = "0" if ks == 0 else v(D+4*mt, 4)
                k(f"v_mfma_f32_16x16x32_bf16 {v(D+4*mt,4)}, {v(Fa[S_]+4*mt,4)}, {v(Fa[S_]+12,4)}, {c}")
        pk = self.vget(6, 2, "kvpk")
        for mt in range(3):
            k(f"v_cvt_pk_bf16_f32 v{pk+2*mt}, v{D+4*mt}, v{D+4*mt+1}\nv_cvt_pk_bf16_f32 v{pk+2*mt+1}, v{D+4*mt+2}, v{D+4*mt+3}")
        k(f"v_and_b32 v{t}, 15, v{L}\ns_lshl_b32 {s(T+2)}, {s(T+1)}, 4\nv_add_u32 v{t}, {s(T+2)}, v{t}")
        k(f"v_lshrrev_b32 v{t+1}, 4, v{L}\nv_mul_u32_u24 v{t+2}, 80, v{t}\nv_lshl_add_u32 v{t+2}, v{t+1}, 3, v{t+2}")
        k(f"s_mul_i32 {s(T+2)}, {s(T)}, 1680\ns_add_u32 {s(T+2)}, {s(T+2)}, {L_KVO}\nv_add_u32 v{t+2}, {s(T+2)}, v{t+2}")
        k(f"v_cmp_gt_u32 vcc, 21, v{t}\ns_and_saveexec_b64 {s(T+4,2)}, vcc")
        hs = [k(f"ds_write_b64 v{t+2}, {v(pk+2*mt,2)} offset:{32*mt}") for mt in range(2)]
        k(f"v_cmp_gt_u32 vcc, 2, v{t+1}\ns_and_b64 exec, exec, vcc")
        hs.append(k(f"ds_write_b64 v{t+2}, {v(pk+4,2)} offset:64"))
        k(f"s_mov_b64 exec, {s(T+4,2)}")
        k.wait(hs[-1])
        self.barrier()
        for r, n in ((D, 12), (Fa[0], 16), (Fa[1], 16), (pk, 6)): self.V.free(r, n)
        d = self.vget(4, 4, "kvout")
        k(f"v_cmp_gt_u32 vcc, 420, v0\ns_and_saveexec_b64 {s(T+4,2)}, vcc")
        lab = k.newlabel("nokvst"); k(f"s_cbranch_execz {lab}")
        with k.cond():
            k(f"v_lshlrev_b32 v{t}, 4, v0\nv_add_u32 v{t+2}, {L_KVO}, v{t}\nds_read_b128 {v(d,4)}, v{t+2}")
            k(f"v_cmp_le_u32 vcc, 210, v0\nv_mov_b32 v{t+1}, {16*KVP_PAIR - 3360}\nv_cndmask_b32 v{t+1}, 0, v{t+1}, vcc\nv_add_u32 v{t}, v{t}, v{t+1}")
            k(f"s_lshl_b32 {s(T)}, {s(self.sGrp)}, 5\ns_add_u32 {s(T)}, {s(T)}, {s(self.sTB)}\ns_mul_i32 {s(T)}, {s(T)}, {KVP_PAIR}\ns_add_u32 {s(T)}, {s(T)}, {WS_KVP}")
            k(f"buffer_store_dwordx4 {v(d,4)}, v{t}, {s(self.rWS,4)}, {s(T)} offen sc1")
        k.label(lab)
        k(f"s_mov_b64 exec, {s(T+4,2)}")
        k.wait_all()
        self.barrier()
        lab = k.newlabel("noflag1")
        k(f"s_cmp_lg_u32 {s(w)}, 0\ns_cbranch_scc1 {lab}")
        with k.cond():
            k(f"s_lshl_b32 {s(T)}, {s(self.sGrp)}, 7\ns_lshl_b32 {s(T+1)}, {s(self.sTB)}, 2\ns_add_u32 {s(T)}, {s(T)}, {s(T+1)}\ns_add_u32 {s(T)}, {s(T)}, {WS_FLAG1}")
            k(f"v_mov_b32 v{t}, {s(self.sTag)}\nv_mov_b32 v{t+1}, 0\ns_mov_b64 {s(T+4,2)}, exec\ns_mov_b64 exec, 1")
            k(f"buffer_store_dword v{t}, v{t+1}, {s(self.rWS,4)}, {s(T)} offen sc1")
            k(f"s_mov_b64 exec, {s(T+4,2)}")
        k.label(lab)
        self.V.free(d, 4); self.V.free(t, 6)


    def c_xch_write(self):
        k = self.k; T = self.sT
        t = self.vget(1, name="xw")
        k(f"s_and_b32 {s(T)}, {s(self.sWave)}, 3\ns_lshl_b32 {s(T)}, {s(T)}, 11\ns_add_u32 {s(T)}, {s(T)}, {KV_XCH}")
        k(f"v_lshlrev_b32 v{t}, 5, v{self.vL}\nv_add_u32 v{t}, {s(T)}, v{t}")
        k(f"ds_write_b128 v{t}, {v(self.vAcc+40,4)}")
        k.wait(k(f"ds_write_b128 v{t}, {v(self.vAcc+44,4)} offset:16"))
        self.V.free(t, 1)


    def h_poll_flags(self, base_sgpr_code, n, name):
        k = self.k; T = self.sT
        a = self.vget(1, name="pa")
        base_sgpr_code()
        k(f"v_min_u32 v{a}, {n-1}, v{self.vL}\nv_lshlrev_b32 v{a}, 2, v{a}\nv_add_u32 v{a}, {s(T)}, v{a}")
        self.poll(a, name=name)
        self.V.free(a, 1)

    def q_reduce_kv(self):
        k = self.k; T = self.sT
        t = self.vget(4, name="qr"); ld = self.vget(32, 4, "kvld"); acc = self.vget(8, 4, "kvacc")
        lab = k.newlabel("nokv")
        k(f"v_cmp_gt_u32 vcc, 420, v0\ns_and_saveexec_b64 {s(T+4,2)}, vcc\ns_cbranch_execz {lab}")
        with k.cond():
            k(f"v_cmp_le_u32 vcc, 210, v0\nv_mov_b32 v{t+1}, {8*KVP_PAIR - 210*16}\nv_cndmask_b32 v{t+1}, 0, v{t+1}, vcc")
            k(f"v_lshl_add_u32 v{t}, v0, 4, v{t+1}")
            k(f"s_mul_i32 {s(T)}, {s(self.sGrp)}, {16*KVP_PAIR}\ns_add_u32 {s(T)}, {s(T)}, {WS_KVP}")
            for i in range(8):
                k(f"buffer_load_dwordx4 {v(ld+4*i,4)}, v{t}, {s(self.rWS,4)}, {s(T)} offen sc1")
                if i < 7: k(f"s_add_u32 {s(T)}, {s(T)}, {KVP_PAIR}")
            for i in range(8):
                for r in range(4):
                    src = ld + 4*i + r
                    if i == 0:
                        k(f"v_lshlrev_b32 v{acc+2*r}, 16, v{src}\nv_and_b32 v{acc+2*r+1}, {s(self.sMaskHi)}, v{src}")
                    else:
                        k(f"v_lshlrev_b32 v{t+2}, 16, v{src}\nv_and_b32 v{t+3}, {s(self.sMaskHi)}, v{src}")
                        k(f"v_add_f32 v{acc+2*r}, v{acc+2*r}, v{t+2}\nv_add_f32 v{acc+2*r+1}, v{acc+2*r+1}, v{t+3}")
            k(f"v_subrev_u32 v{t+1}, 210, v0\nv_lshlrev_b32 v{t+1}, 5, v{t+1}\nv_add_u32 v{t+1}, {Q_SUM}, v{t+1}")
            k(f"v_cmp_le_u32 vcc, 210, v0\ns_and_b64 exec, exec, vcc")
            k(f"ds_write_b128 v{t+1}, {v(acc,4)}")
            k.wait(k(f"ds_write_b128 v{t+1}, {v(acc+4,4)} offset:16"))
        k.label(lab)
        k(f"s_mov_b64 exec, {s(T+4,2)}")
        k.wait_all()
        self.barrier("Bsum")
        lab = k.newlabel("nokv2")
        k(f"v_cmp_gt_u32 vcc, 210, v0\ns_and_saveexec_b64 {s(T+4,2)}, vcc\ns_cbranch_execz {lab}")
        with k.cond():
            k(f"v_lshlrev_b32 v{t+1}, 5, v0\nv_add_u32 v{t+1}, {Q_SUM}, v{t+1}")
            k(f"ds_read_b128 {v(ld,4)}, v{t+1}\nds_read_b128 {v(ld+4,4)}, v{t+1} offset:16")
            for r in range(8): k(f"v_add_f32 v{acc+r}, v{acc+r}, v{ld+r}")
            for r in range(4): k(f"v_cvt_pk_bf16_f32 v{ld+8+r}, v{acc+2*r}, v{acc+2*r+1}")
            k(f"v_lshlrev_b32 v{t+1}, 4, v0\nv_add_u32 v{t+1}, {Q_KVT}, v{t+1}")
            k.wait(k(f"ds_write_b128 v{t+1}, {v(ld+8,4)}"))
        k.label(lab)
        k(f"s_mov_b64 exec, {s(T+4,2)}")
        k.wait_all()
        self.barrier("Bkvt")
        self.vfree((t, 4), (ld, 32), (acc, 8))

    def q_out(self, PH):
        k = self.k; T = self.sT; L = self.vL; w = self.sWave
        t = self.vget(6, name="qo"); A = self.vget(40, 4, "A2"); O = self.vget(32, 4, "O2")
        k(f"v_bfe_u32 v{t}, v{L}, 3, 2\nv_bfe_u32 v{t+1}, v{L}, 2, 1\nv_and_b32 v{t+2}, 3, v{L}\nv_lshrrev_b32 v{t+3}, 5, v{L}")
        k(f"v_lshl_add_u32 v{t}, v{t}, 2, v{t+2}\nv_mul_u32_u24 v{t}, 80, v{t}\nv_mul_u32_u24 v{t+2}, 1680, v{t+1}\nv_add_u32 v{t}, v{t}, v{t+2}")
        k(f"v_add_u32 v{t}, {Q_KVT}, v{t}\nv_add_u32 v{t+4}, 1280, v{t}\nv_mov_b32 v{t+5}, {L_ZERO}")
        k(f"v_cmp_eq_u32 vcc, v{t+1}, v{t+3}\nv_cndmask_b32 v{t}, v{t+5}, v{t}, vcc\nv_cndmask_b32 v{t+4}, v{t+5}, v{t+4}, vcc")
        for st in range(5):
            k(f"ds_read_b128 {v(A+4*st,4)}, v{t} offset:{16*st}\nds_read_b128 {v(A+20+4*st,4)}, v{t+4} offset:{16*st}")
        for st in range(5):
            for tile in range(2):
                c = "0" if st == 0 else v(O+16*tile, 16)
                k(f"v_mfma_f32_32x32x16_bf16 {v(O+16*tile,16)}, {v(A+20*tile+4*st,4)}, {v(PH+4*st,4)}, {c}")
        k(f"v_add_f32 v{t}, 0x358637bd, v{O+20}\nv_rcp_f32 v{t}, v{t}")
        o = [O+i for i in range(16)] + [O+16+i for i in range(4)]
        pk = A
        for j in range(10):
            k(f"v_mul_f32 v{o[2*j]}, v{o[2*j]}, v{t}\nv_mul_f32 v{o[2*j+1]}, v{o[2*j+1]}, v{t}\nv_cvt_pk_bf16_f32 v{pk+j}, v{o[2*j]}, v{o[2*j+1]}")
        k(f"s_lshl_b32 {s(T)}, {s(w)}, 5\ns_add_u32 {s(T)}, {s(T)}, {s(self.sTok0)}\nv_and_b32 v{t}, 31, v{L}\nv_add_u32 v{t}, {s(T)}, v{t}")
        k(f"v_lshrrev_b32 v{t+1}, 4, v{t}\nv_mul_u32_u24 v{t+1}, 20480, v{t+1}\nv_and_b32 v{t}, 15, v{t}\nv_lshl_add_u32 v{t+1}, v{t}, 4, v{t+1}")
        k(f"v_lshrrev_b32 v{t+2}, 5, v{L}\nv_lshl_add_u32 v{t+3}, v{t+2}, 9, v{t+1}\nv_lshl_add_u32 v{t+4}, v{t+2}, 3, v{t+1}")
        k(f"s_mul_i32 {s(T)}, {s(self.sGrp)}, 1280\ns_add_u32 {s(T)}, {s(T)}, {WS_OBUF}")
        k(f"buffer_store_dwordx4 {v(pk,4)}, v{t+3}, {s(self.rWS,4)}, {s(T)} offen sc1")
        k(f"buffer_store_dwordx4 {v(pk+4,4)}, v{t+3}, {s(self.rWS,4)}, {s(T)} offen offset:256 sc1")
        k(f"buffer_store_dwordx2 {v(pk+8,2)}, v{t+4}, {s(self.rWS,4)}, {s(T)} offen offset:1024 sc1")
        k.wait_all()
        self.barrier("Bo")
        lab = k.newlabel("noflag2")
        k(f"s_cmp_lg_u32 {s(w)}, 0\ns_cbranch_scc1 {lab}")
        with k.cond():
            k(f"s_lshl_b32 {s(T)}, {s(self.sTB)}, 7\ns_lshl_b32 {s(T+1)}, {s(self.sGrp)}, 2\ns_add_u32 {s(T)}, {s(T)}, {s(T+1)}\ns_add_u32 {s(T)}, {s(T)}, {WS_FLAG2}")
            k(f"v_mov_b32 v{t}, {s(self.sTag)}\nv_mov_b32 v{t+1}, 0")
            with self.lane0():
                k(f"buffer_store_dword v{t}, v{t+1}, {s(self.rWS,4)}, {s(T)} offen sc1")
        k.label(lab)
        self.vfree((t, 6), (A, 40), (O, 32), (PH, 20))

    def p3_scalars(self):
        k = self.k; T = self.sT
        self.sT32 = self.sget(name="tb32"); self.sCS = self.sget(name="cslice")
        k(f"s_and_b32 {s(T)}, {s(self.sSlot)}, 7\ns_lshl_b32 {s(self.sT32)}, {s(self.sA)}, 3\ns_add_u32 {s(self.sT32)}, {s(self.sT32)}, {s(T)}")
        k(f"s_lshr_b32 {s(T)}, {s(self.sSlot)}, 3\ns_lshl_b32 {s(self.sCS)}, {s(self.sB)}, 2\ns_add_u32 {s(self.sCS)}, {s(self.sCS)}, {s(T)}")

    def h_wo_dma(self):
        k = self.k; T = self.sT; L = self.vL; hw = self.sH
        self.srd(self.rT, self.pWO, 819200)
        t = self.vget(6, name="wod"); a = self.vget(2, name="woa")
        k(f"v_lshrrev_b32 v{t}, 3, v{L}\nv_mul_u32_u24 v{t+1}, 1280, v{t}\nv_bfe_u32 v{t+2}, v{L}, 4, 1\nv_and_b32 v{t+3}, 7, v{L}")
        k(f"s_mul_i32 {s(T)}, {s(self.sCS)}, 160\ns_mul_i32 {s(T+1)}, {s(hw)}, {160*1280}\ns_add_u32 {s(T)}, {s(T)}, {s(T+1)}")
        for par in range(2):
            k(f"v_lshlrev_b32 v{t+4}, 1, v{t+2}\nv_or_b32 v{t+4}, {4*par}, v{t+4}\nv_xor_b32 v{t+4}, v{t+4}, v{t+3}\nv_lshl_add_u32 v{a+par}, v{t+4}, 4, v{t+1}")
        k(f"s_mul_i32 {s(T+2)}, {s(hw)}, {20*1024}\ns_add_u32 {s(T+2)}, {s(T+2)}, {L_WA}")
        for o in range(20):
            nb = 5*(o//5) + PERM[o % 5]
            k(f"s_add_u32 m0, {s(T+2)}, {o*1024}\ns_add_u32 {s(T+3)}, {s(T)}, {nb*8*1280}")
            k(f"buffer_load_dwordx4 v{a + (o & 1)}, {s(self.rT,4)}, {s(T+3)} offen lds")
        k(f"v_lshrrev_b32 v{t}, 4, v{L}\nv_bfe_u32 v{t+1}, v{L}, 1, 3\nv_and_b32 v{t+2}, 1, v{t}\nv_lshlrev_b32 v{t+2}, 2, v{t+2}\nv_xor_b32 v{t+1}, v{t+1}, v{t+2}")
        k(f"v_and_b32 v{t+2}, 1, v{L}\nv_lshlrev_b32 v{t+2}, 4, v{t+2}\nv_add_u32 v{t+2}, 128, v{t+2}")
        k(f"s_mul_i32 {s(T+2)}, {s(hw)}, {5*1024}\ns_add_u32 {s(T+2)}, {s(T+2)}, {L_WB}")
        for j in range(5):
            k(f"v_add_u32 v{t+3}, {4*j}, v{t}")
            self.divmod_(t+4, t+5, t+3, 5, T+4)
            k(f"v_lshrrev_b32 v{t+3}, 1, v{t+5}\nv_add_u32 v{t+3}, v{t+5}, v{t+3}\nv_cmp_gt_u32 vcc, 4, v{t+5}\nv_cndmask_b32 v{t+3}, 2, v{t+3}, vcc")
            k(f"v_mad_u32_u24 v{t+3}, v{t+4}, 5, v{t+3}\nv_lshl_add_u32 v{t+3}, v{t+3}, 3, v{t+1}\nv_mul_u32_u24 v{t+3}, 1280, v{t+3}\nv_add_u32 v{a}, v{t+3}, v{t+2}")
            k(f"s_add_u32 m0, {s(T+2)}, {j*1024}")
            k(f"buffer_load_dwordx4 v{a}, {s(self.rT,4)}, {s(T)} offen lds")
        self.vfree((t, 6), (a, 2))

    def p3_prefetch_items(self, nthreads_lo):
        k = self.k; T = self.sT
        self.vI = self.vget(3, name="item"); self.vIx = self.vget(4, 4, "itemx"); self.vIs = self.vget(4, 4, "itemst")
        I = self.vI
        self.divmod_(I, I+1, 0, 10, T)
        k(f"s_lshl_b32 {s(T)}, {s(self.sT32)}, 6\nv_min_u32 v{I}, 63, v{I}\nv_add_u32 v{I+2}, {s(T)}, v{I}")
        t = self.vget(2, name="pi")
        k(f"v_mul_u32_u24 v{t}, 1280, v{I+2}\nv_lshl_add_u32 v{t}, v{I+1}, 4, v{t}\ns_mul_i32 {s(T)}, {s(self.sCS)}, 160")
        k(f"buffer_load_dwordx4 {v(self.vIx,4)}, v{t}, {s(self.rX,4)}, {s(T)} offen")
        k(f"v_lshlrev_b32 v{t+1}, 4, v{I+2}\nv_add_u32 v{t+1}, {WS_STATS}, v{t+1}")
        k(f"buffer_load_dwordx4 {v(self.vIs,4)}, v{t+1}, {s(self.rWS,4)}, 0 offen sc1")
        self.V.free(t, 2)

    def p3_gemm(self):
        k = self.k; T = self.sT; L = self.vL; w = self.sWave
        t = self.vget(4, name="p3t"); B = self.vget(40, 4, "p3B"); D = self.vget(20, 4, "p3D")
        aA = self.vget(4, name="p3aA"); aB = self.vget(2, name="p3aB")
        k(f"s_and_b32 {s(T)}, {s(w)}, 3\ns_lshl_b32 {s(T+1)}, {s(self.sT32)}, 2\ns_add_u32 {s(T)}, {s(T)}, {s(T+1)}\ns_mul_i32 {s(T)}, {s(T)}, 20480")
        k(f"s_lshr_b32 {s(T+1)}, {s(w)}, 2\ns_mul_i32 {s(T+2)}, {s(T+1)}, 10240\ns_add_u32 {s(T)}, {s(T)}, {s(T+2)}\ns_add_u32 {s(T)}, {s(T)}, {WS_OBUF}")
        k(f"v_lshlrev_b32 v{t}, 4, v{L}")
        for j in range(10):
            k(f"buffer_load_dwordx4 {v(B+4*j,4)}, v{t}, {s(self.rWS,4)}, {s(T)} offen sc1")
            if j < 9: k(f"s_add_u32 {s(T)}, {s(T)}, 1024")
        k(f"v_lshrrev_b32 v{t}, 4, v{L}\nv_bfe_u32 v{t+1}, v{L}, 2, 2\nv_and_b32 v{t+2}, 3, v{L}")
        k(f"v_lshlrev_b32 v{aA}, 10, v{t}\nv_lshl_add_u32 v{aA}, v{t+1}, 7, v{aA}\nv_lshl_add_u32 v{aA}, v{t+2}, 3, v{aA}")
        k(f"v_lshrrev_b32 v{t+3}, 1, v{t+1}\nv_lshl_add_u32 v{aA}, v{t+3}, 5, v{aA}\nv_and_b32 v{t+3}, 1, v{t}\nv_lshl_add_u32 v{aA}, v{t+3}, 6, v{aA}")
        k(f"s_mul_i32 {s(T+2)}, {s(T+1)}, 40960\ns_add_u32 {s(T+2)}, {s(T+2)}, {L_WA}")
        for mt in range(1, 4): k(f"v_xor_b32 v{aA+mt}, {mt << 5}, v{aA}")
        for mt in range(4): k(f"v_add_u32 v{aA+mt}, {s(T+2)}, v{aA+mt}")
        k(f"v_lshlrev_b32 v{aB}, 8, v{t}\nv_lshl_add_u32 v{aB}, v{t+1}, 5, v{aB}\nv_lshl_add_u32 v{aB}, v{t+2}, 3, v{aB}")
        k(f"s_mul_i32 {s(T+2)}, {s(T+1)}, 10240\ns_add_u32 {s(T+2)}, {s(T+2)}, {L_WB}\nv_add_u32 v{aB}, {s(T+2)}, v{aB}")
        k(f"v_lshlrev_b32 v{t+3}, 7, v{t+3}\nv_xor_b32 v{aB+1}, 128, v{t+3}\nv_add_u32 v{aB+1}, v{aB+1}, v{aB}\nv_add_u32 v{aB}, v{t+3}, v{aB}")
        F = [self.vget(20, 4, f"p3F{i}") for i in range(2)]
        def rd(S_, j):
            for mt in range(4):
                for h in range(2): k(f"ds_read_b64_tr_b16 {v(F[S_]+4*mt+2*h,2)}, v{aA+mt} offset:{4096*j + 512*h}")
            for h in range(2): k(f"ds_read_b64_tr_b16 {v(F[S_]+16+2*h,2)}, v{aB+h} offset:{1024*j}")
        rd(0, 0)
        for j in range(10):
            if j < 9: rd((j+1) & 1, j+1)
            for mt in range(5):
                c = "0" if j == 0 else v(D+4*mt, 4)
                k(f"v_mfma_f32_16x16x32_bf16 {v(D+4*mt,4)}, {v(F[j & 1]+4*mt,4)}, {v(B+4*j,4)}, {c}")
        return dict(t=t, B=B, D=D, aA=aA, aB=aB, F=F)

    def p3_tile_write(self, R):
        k = self.k; T = self.sT; L = self.vL; w = self.sWave
        t, D = R["t"], R["D"]
        k(f"s_and_b32 {s(T)}, {s(w)}, 3\ns_lshl_b32 {s(T)}, {s(T)}, 4\nv_and_b32 v{t}, 15, v{L}\nv_add_u32 v{t}, {s(T)}, v{t}\nv_mul_u32_u24 v{t}, {OT_STR}, v{t}")
        k(f"v_lshrrev_b32 v{t+1}, 4, v{L}\nv_lshl_add_u32 v{t}, v{t+1}, 4, v{t}\ns_lshr_b32 {s(T)}, {s(w)}, 2\ns_mul_i32 {s(T)}, {s(T)}, {OT_KH}\ns_add_u32 {s(T)}, {s(T)}, {L_OT}\nv_add_u32 v{t}, {s(T)}, v{t}")
        hs = [k(f"ds_write_b128 v{t}, {v(D+4*mt,4)} offset:{64*mt}") for mt in range(5)]
        k.wait(hs[-1])
        self.vfree((t, 4), (R["B"], 40), (D, 20), (R["aA"], 4), (R["aB"], 2), (R["F"][0], 20), (R["F"][1], 20))

    def p3_items(self):
        k = self.k; T = self.sT
        I, X, St = self.vI, self.vIx, self.vIs
        t = self.vget(4, name="it"); a = self.vget(16, 4, "ita"); o = self.vget(4, 4, "ito")
        lab = k.newlabel("noitem")
        k(f"v_cmp_gt_u32 vcc, 640, v0\ns_and_saveexec_b64 {s(T+4,2)}, vcc\ns_cbranch_execz {lab}")
        with k.cond():
            k(f"v_mul_u32_u24 v{t}, {OT_STR}, v{I}\nv_lshl_add_u32 v{t}, v{I+1}, 5, v{t}\nv_add_u32 v{t}, {L_OT}, v{t}")
            k(f"ds_read_b128 {v(a,4)}, v{t}\nds_read_b128 {v(a+4,4)}, v{t} offset:16")
            k(f"ds_read_b128 {v(a+8,4)}, v{t} offset:{OT_KH}\nds_read_b128 {v(a+12,4)}, v{t} offset:{OT_KH+16}")
            again, ok = k.newlabel("ist_again"), k.newlabel("ist_ok")
            k.wait_all()
            with k.manual():
                k(f"s_mov_b32 {s(T+2)}, 0")
                k.label(again)
                k(f"v_cmp_ne_u32 vcc, {s(self.sTag)}, v{St+1}\nv_cmp_ne_u32 {s(T,2)}, {s(self.sTag)}, v{St+3}")
                k(f"s_nop 1\ns_or_b64 vcc, vcc, {s(T,2)}\ns_cbranch_vccz {ok}")
                k(f"s_add_u32 {s(T+2)}, {s(T+2)}, 1\ns_cmp_gt_u32 {s(T+2)}, {SPIN_MAX}\ns_cbranch_scc1 {ok}")
                k(f"v_lshlrev_b32 v{t+1}, 4, v{I+2}\nv_add_u32 v{t+1}, {WS_STATS}, v{t+1}")
                k(f"buffer_load_dwordx4 {v(St,4)}, v{t+1}, {s(self.rWS,4)}, 0 offen sc1\ns_waitcnt vmcnt(0)\ns_branch {again}")
                k.label(ok)
            for r in range(8): k(f"v_add_f32 v{a+r}, v{a+r}, v{a+8+r}")
            ylab = k.newlabel("noy")
            k(f"v_cmp_eq_u32 vcc, {s(self.sIdx)}, v{I+2}\ns_and_saveexec_b64 {s(T,2)}, vcc\ns_cbranch_execz {ylab}")
            with k.cond():
                k(f"v_lshlrev_b32 v{t+1}, 5, v{I+1}\nv_add_u32 v{t+1}, {L_YS}, v{t+1}")
                for sgm in range(12):
                    k(f"ds_read_b128 {v(a+8,4)}, v{t+1} offset:{320*sgm}\nds_read_b128 {v(a+12,4)}, v{t+1} offset:{320*sgm+16}")
                    for r in range(8): k(f"v_add_f32 v{a+r}, v{a+r}, v{a+8+r}")
            k.label(ylab)
            k(f"s_mov_b64 exec, {s(T,2)}")
            k.wait_all()
            k(f"v_add_f32 v{t+1}, 1.0, v{St+2}\nv_mul_f32 v{t+2}, v{St}, v{St+2}")
            for r in range(4):
                k(f"v_lshlrev_b32 v{a+8}, 16, v{X+r}\nv_and_b32 v{a+9}, {s(self.sMaskHi)}, v{X+r}")
                k(f"v_fma_f32 v{a+8}, v{a+8}, v{t+1}, -v{t+2}\nv_fma_f32 v{a+9}, v{a+9}, v{t+1}, -v{t+2}")
                k(f"v_add_f32 v{a+2*r}, v{a+2*r}, v{a+8}\nv_add_f32 v{a+2*r+1}, v{a+2*r+1}, v{a+9}")
                k(f"v_cvt_pk_bf16_f32 v{o+r}, v{a+2*r}, v{a+2*r+1}")
            self.srd(self.rT, self.pOUT, 2621440)
            k(f"v_mul_u32_u24 v{t}, 1280, v{I+2}\nv_lshl_add_u32 v{t}, v{I+1}, 4, v{t}\ns_mul_i32 {s(T)}, {s(self.sCS)}, 160")
            k(f"buffer_store_dwordx4 {v(o,4)}, v{t}, {s(self.rT,4)}, {s(T)} offen")
        k.label(lab)
        k(f"s_mov_b64 exec, {s(T+4,2)}")
        self.vfree((t, 4), (a, 16), (o, 4), (I, 3), (X, 4), (St, 4))

    def moe_scalars(self):
        k = self.k; T = self.sT
        self.sM = self.sget(name="moeslice")
        k(f"s_and_b32 {s(T)}, s2, 7\ns_bfe_u32 {s(T+1)}, {s(self.sSlot)}, 0x20002\ns_lshl_b32 {s(T+1)}, {s(T+1)}, 3\ns_add_u32 {s(T)}, {s(T)}, {s(T+1)}")
        k(f"s_lshl_b32 {s(T)}, {s(T)}, 2\ns_and_b32 {s(T+1)}, {s(self.sSlot)}, 3\ns_add_u32 {s(self.sM)}, {s(T)}, {s(T+1)}")

    def h_select(self, with_row):
        k = self.k; T = self.sT; L = self.vL
        c = self.vget(8, 4, "cand"); a = self.vget(2, name="canda")
        k(f"v_lshlrev_b32 v{a}, 3, v{L}\nv_add_u32 v{a}, {WS_CAND}, v{a}")
        again, ok = k.newlabel("sel_again"), k.newlabel("sel_ok")
        k.wait_all()
        with k.manual():
            k(f"s_mov_b32 {s(T+2)}, 0")
            k.label(again)
            for j in range(4): k(f"buffer_load_dwordx2 {v(c+2*j,2)}, v{a}, {s(self.rWS,4)}, 0 offen offset:{512*j} sc1")
            k("s_waitcnt vmcnt(0)")
            k(f"v_cmp_ne_u32 vcc, {s(self.sTag)}, v{c+1}")
            for j in range(1, 4): k(f"v_cmp_ne_u32 {s(T,2)}, {s(self.sTag)}, v{c+2*j+1}\ns_nop 1\ns_or_b64 vcc, vcc, {s(T,2)}")
            k(f"s_cbranch_vccz {ok}\ns_add_u32 {s(T+2)}, {s(T+2)}, 1\ns_cmp_gt_u32 {s(T+2)}, {SPIN_MAX}\ns_cbranch_scc0 {again}")
            k.label(ok)
        k.sync_state()
        k(f"v_max_u32 v{c}, v{c}, v{c+2}\nv_max_u32 v{c+4}, v{c+4}, v{c+6}\nv_max_u32 v{c}, v{c}, v{c+4}")
        wave_umax(k, c)
        k(f"v_readlane_b32 {s(T)}, v{c}, 63")
        k(f"s_and_b32 {s(T+1)}, {s(T)}, 2047\ns_sub_u32 {s(T+1)}, 2047, {s(T+1)}")
        lab = k.newlabel("noepoch")
        k(f"s_cmp_lg_u32 s2, 0\ns_cbranch_scc1 {lab}")
        with k.cond():
            k(f"s_add_u32 {s(T+2)}, {s(self.sEp)}, 1\nv_mov_b32 v{c+2}, {s(T+2)}\nv_mov_b32 v{c+3}, {WS_EPOCH}")
            with self.lane0(): k(f"buffer_store_dword v{c+2}, v{c+3}, {s(self.rWS,4)}, 0 offen sc1")
        k.label(lab)
        k(f"v_mov_b32 v{c+4}, {s(T+1)}\nv_mov_b32 v{c+5}, {s(T)}\nv_mov_b32 v{a}, {L_SEL}")
        with self.lane0(): h = k(f"ds_write_b64 v{a}, {v(c+4,2)}")
        if with_row:
            x = self.vget(5, name="selx"); st = self.vget(4, 4, "selst")
            k(f"s_mul_i32 {s(T+2)}, {s(T+1)}, 1280\nv_lshlrev_b32 v{a}, 2, v{L}")
            for j in range(5): k(f"buffer_load_dword v{x+j}, v{a}, {s(self.rX,4)}, {s(T+2)} offen offset:{256*j}")
            k(f"s_lshl_b32 {s(T+2)}, {s(T+1)}, 4\ns_add_u32 {s(T+2)}, {s(T+2)}, {WS_STATS}\nv_mov_b32 v{a+1}, 0")
            again, ok = k.newlabel("sst_again"), k.newlabel("sst_ok")
            k.wait_all()
            with k.manual():
                k(f"s_mov_b32 {s(T+3)}, 0")
                k.label(again)
                k(f"buffer_load_dwordx4 {v(st,4)}, v{a+1}, {s(self.rWS,4)}, {s(T+2)} offen sc1\ns_waitcnt vmcnt(0)")
                k(f"v_cmp_ne_u32 vcc, {s(self.sTag)}, v{st+1}\nv_cmp_ne_u32 {s(T,2)}, {s(self.sTag)}, v{st+3}\ns_nop 1\ns_or_b64 vcc, vcc, {s(T,2)}")
                k(f"s_cbranch_vccz {ok}\ns_add_u32 {s(T+3)}, {s(T+3)}, 1\ns_cmp_gt_u32 {s(T+3)}, {SPIN_MAX}\ns_cbranch_scc0 {again}")
                k.label(ok)
            k.sync_state()
            k(f"v_mul_f32 v{c}, v{st}, v{st+2}")
            hs = []
            for j in range(5):
                k(f"v_lshlrev_b32 v{c+2}, 16, v{x+j}\nv_and_b32 v{c+3}, {s(self.sMaskHi)}, v{x+j}")
                k(f"v_fma_f32 v{c+2}, v{c+2}, v{st+2}, -v{c}\nv_fma_f32 v{c+3}, v{c+3}, v{st+2}, -v{c}\nv_cvt_pk_bf16_f32 v{c+4}, v{c+2}, v{c+3}")
                k(f"v_add_u32 v{c+5}, {L_XSEL + 256*j}, v{a}")
                hs.append(k(f"ds_write_b32 v{c+5}, v{c+4}"))
            self.vfree((x, 5), (st, 4))
        k.wait_all()
        self.vfree((c, 8), (a, 2))

    def h_gu_dma(self):
        k = self.k; T = self.sT; L = self.vL; hw = self.sH
        a = self.vget(2, name="gua")
        k(f"v_lshrrev_b32 v{a}, 1, v{L}\nv_mul_u32_u24 v{a}, 3456, v{a}\nv_and_b32 v{a+1}, 1, v{L}\nv_lshl_add_u32 v{a}, v{a+1}, 4, v{a}")
        k(f"s_lshl_b32 {s(T)}, {s(self.sM)}, 5\ns_mul_i32 {s(T+1)}, {s(hw)}, {160*3456}\ns_add_u32 {s(T)}, {s(T)}, {s(T+1)}\ns_mul_i32 {s(T+1)}, {s(hw)}, 5120")
        for ptr, base in ((self.pWG, L_G), (self.pWU, L_U)):
            self.srd(self.rT, ptr, 2211840)
            for j in range(5):
                k(f"s_add_u32 m0, {s(T+1)}, {base + j*1024}\ns_add_u32 {s(T+2)}, {s(T)}, {j*32*3456}")
                k(f"buffer_load_dwordx4 v{a}, {s(self.rT,4)}, {s(T+2)} offen lds")
        self.V.free(a, 2)

    def c_wd_prefetch(self):
        k = self.k; T = self.sT
        self.vWD = self.vget(32, 2, "wd")
        a = self.vget(1, name="wda")
        self.srd(self.rT, self.pWD, 2211840)
        lab = k.newlabel("nowd")
        k(f"s_cmp_ge_u32 {s(self.sWave)}, 3\ns_cbranch_scc1 {lab}")
        with k.cond():
            k(f"v_min_u32 v{a}, 159, v0\nv_lshlrev_b32 v{a}, 3, v{a}\ns_mul_i32 {s(T)}, {s(self.sM)}, {16*1280}")
            for r in range(16):
                k(f"buffer_load_dwordx2 {v(self.vWD+2*r,2)}, v{a}, {s(self.rT,4)}, {s(T)} offen offset:{1280*r if r < 3 else 0}" if False else
                  f"buffer_load_dwordx2 {v(self.vWD+2*r,2)}, v{a}, {s(self.rT,4)}, {s(T)} offen")
                if r < 15: k(f"s_add_u32 {s(T)}, {s(T)}, 1280")
        k.label(lab)
        self.V.free(a, 1)

    def c_moe(self):
        k = self.k; T = self.sT; L = self.vL; w = self.sWave
        t = self.vget(6, name="mo"); A = self.vget(20, 4, "moA"); B = self.vget(20, 4, "moB"); D = self.vget(16, 4, "moD")
        k(f"v_bfe_u32 v{t}, v{L}, 4, 1\nv_mul_u32_u24 v{t}, {L_U - L_G}, v{t}\nv_bfe_u32 v{t+1}, v{L}, 2, 2\nv_lshrrev_b32 v{t+2}, 5, v{L}\nv_and_b32 v{t+3}, 3, v{L}")
        k(f"v_lshl_add_u32 v{t+1}, v{t+2}, 3, v{t+1}\nv_lshl_add_u32 v{t}, v{t+1}, 5, v{t}\nv_lshl_add_u32 v{t}, v{t+3}, 3, v{t}")
        k(f"s_mul_i32 {s(T)}, {s(w)}, {80*32}\ns_add_u32 {s(T)}, {s(T)}, {L_G}\nv_add_u32 v{t}, {s(T)}, v{t}")
        k(f"s_mul_i32 {s(T)}, {s(w)}, 160\ns_add_u32 {s(T)}, {s(T)}, {L_XSEL}\nv_lshlrev_b32 v{t+1}, 4, v{t+2}\nv_add_u32 v{t+1}, {s(T)}, v{t+1}")
        for st in range(5):
            for h in range(2): k(f"ds_read_b64_tr_b16 {v(A+4*st+2*h,2)}, v{t} offset:{512*st + 128*h}")
            k(f"ds_read_b128 {v(B+4*st,4)}, v{t+1} offset:{32*st}")
        for st in range(5):
            c = "0" if st == 0 else v(D, 16)
            k(f"v_mfma_f32_32x32x16_bf16 {v(D,16)}, {v(A+4*st,4)}, {v(B+4*st,4)}, {c}")
        k(f"v_lshrrev_b32 v{t}, 5, v{L}\nv_lshlrev_b32 v{t}, 7, v{t}\ns_lshl_b32 {s(T)}, {s(w)}, 2\ns_add_u32 {s(T)}, {s(T)}, {L_GUP}\nv_add_u32 v{t}, {s(T)}, v{t}")
        k(f"s_mov_b64 {s(T+4,2)}, exec\ns_mov_b32 exec_lo, 1\ns_mov_b32 exec_hi, 1")
        hs = []
        for g in range(4):
            for i in range(4): hs.append(k(f"ds_write_b32 v{t}, v{D+4*g+i} offset:{(8*g+i)*32}"))
        k(f"s_mov_b64 exec, {s(T+4,2)}")
        k.wait(hs[-1])
        self.barrier("Bh")
        lab = k.newlabel("nomoe4")
        k(f"s_cmp_ge_u32 {s(w)}, 3\ns_cbranch_scc1 {lab}")
        with k.cond():
            k(f"v_and_b32 v{t}, 15, v{L}\nv_lshlrev_b32 v{t}, 5, v{t}\nv_add_u32 v{t}, {L_GUP}, v{t}")
            k(f"ds_read_b128 {v(A,4)}, v{t}\nds_read_b128 {v(A+4,4)}, v{t} offset:16\nds_read_b128 {v(A+8,4)}, v{t} offset:512\nds_read_b128 {v(A+12,4)}, v{t} offset:528")
            k(f"v_add_f32 v{t+1}, v{A}, v{A+1}\nv_add_f32 v{t+2}, v{A+8}, v{A+9}")
            for j in range(2, 8): k(f"v_add_f32 v{t+1}, v{t+1}, v{A+j}\nv_add_f32 v{t+2}, v{t+2}, v{A+8+j}")
            k(f"v_cvt_pk_bf16_f32 v{t+3}, v{t+1}, v{t+2}\nv_lshlrev_b32 v{t+1}, 16, v{t+3}\nv_and_b32 v{t+2}, {s(self.sMaskHi)}, v{t+3}")
            k(f"v_mul_f32 v{t+3}, 0xbfb8aa3b, v{t+1}\nv_exp_f32 v{t+3}, v{t+3}\nv_add_f32 v{t+3}, 1.0, v{t+3}\nv_rcp_f32 v{t+3}, v{t+3}\nv_mul_f32 v{t+1}, v{t+1}, v{t+3}")
            k(f"v_cvt_pk_bf16_f32 v{t+1}, v{t+1}, v{t+1}\nv_lshlrev_b32 v{t+1}, 16, v{t+1}\nv_mul_f32 v{t+1}, v{t+1}, v{t+2}")
            k(f"v_cvt_pk_bf16_f32 v{t+1}, v{t+1}, v{t+1}\nv_lshlrev_b32 v{t+1}, 16, v{t+1}")
            k(f"v_mov_b32 v{t+2}, {L_SEL}\nds_read_b32 v{t+3}, v{t+2} offset:4")
            k(f"v_and_b32 v{t+3}, 0xfffff800, v{t+3}\nv_ashrrev_i32 v{t+4}, 31, v{t+3}\nv_not_b32 v{t+4}, v{t+4}\nv_or_b32 v{t+4}, 0x80000000, v{t+4}\nv_xor_b32 v{t+3}, v{t+3}, v{t+4}")
            k(f"v_mul_f32 v{t+3}, 0xbfb8aa3b, v{t+3}\nv_exp_f32 v{t+3}, v{t+3}\nv_add_f32 v{t+3}, 1.0, v{t+3}\nv_rcp_f32 v{t+3}, v{t+3}")
            k(f"v_mul_f32 v{t+1}, v{t+1}, v{t+3}")
            k(f"s_lshl_b32 {s(T)}, {s(w)}, 6\ns_add_u32 {s(T)}, {s(T)}, {L_H}\nv_and_b32 v{t}, 15, v{L}\nv_lshlrev_b32 v{t}, 2, v{t}\nv_add_u32 v{t}, {s(T)}, v{t}")
            k.wait(k(f"ds_write_b32 v{t}, v{t+1}"))
            k(f"v_mov_b32 v{t}, {s(T)}")
            for q in range(4): k(f"ds_read_b128 {v(A+4*q,4)}, v{t} offset:{16*q}")
            y = D
            for r in range(16):
                W0, W1 = self.vWD + 2*r, self.vWD + 2*r + 1
                k(f"v_lshlrev_b32 v{B}, 16, v{W0}\nv_and_b32 v{B+1}, {s(self.sMaskHi)}, v{W0}\nv_lshlrev_b32 v{B+2}, 16, v{W1}\nv_and_b32 v{B+3}, {s(self.sMaskHi)}, v{W1}")
                for e in range(4):
                    if r == 0: k(f"v_mul_f32 v{y+e}, v{A+r}, v{B+e}")
                    else: k(f"v_fmac_f32 v{y+e}, v{A+r}, v{B+e}")
            k(f"v_lshlrev_b32 v{t}, 4, v0\ns_mul_i32 {s(T)}, {s(self.sM)}, 2560\ns_add_u32 {s(T)}, {s(T)}, {WS_YP}")
            k(f"v_cmp_gt_u32 vcc, 160, v0\ns_and_saveexec_b64 {s(T+4,2)}, vcc")
            k(f"buffer_store_dwordx4 {v(y,4)}, v{t}, {s(self.rWS,4)}, {s(T)} offen sc1")
            k(f"s_mov_b64 exec, {s(T+4,2)}")
            k.wait_all()
        k.label(lab)
        k.wait_all()
        self.barrier("By")
        lab = k.newlabel("noflag3")
        k(f"s_cmp_lg_u32 {s(w)}, 0\ns_cbranch_scc1 {lab}")
        with k.cond():
            k(f"s_lshl_b32 {s(T)}, {s(self.sM)}, 2\ns_add_u32 {s(T)}, {s(T)}, {WS_FLAG3}\nv_mov_b32 v{t}, {s(self.sTag)}\nv_mov_b32 v{t+1}, 0")
            with self.lane0(): k(f"buffer_store_dword v{t}, v{t+1}, {s(self.rWS,4)}, {s(T)} offen sc1")
        k.label(lab)
        self.vfree((t, 6), (A, 20), (B, 20), (D, 16))

    def h_ysum(self):
        k = self.k; T = self.sT; L = self.vL; hw = self.sH
        a = self.vget(3, name="ysa")
        k(f"v_min_u32 v{a}, 53, v{L}\nv_lshlrev_b32 v{a}, 2, v{a}\nv_add_u32 v{a}, {WS_FLAG3}, v{a}")
        self.poll(a, name="f3a")
        k(f"v_add_u32 v{a}, {54*4}, v{a}")
        self.poll(a, name="f3b")
        ld = self.vget(36, 4, "ysld"); acc = self.vget(4, 4, "ysacc")
        k(f"s_lshl_b32 {s(T)}, {s(hw)}, 6\nv_add_u32 v{a}, {s(T)}, v{L}")
        self.divmod_(a+1, a+2, a, 20, T+1)
        k(f"v_cmp_gt_u32 vcc, 240, v{a}\ns_and_saveexec_b64 {s(T+4,2)}, vcc")
        lab = k.newlabel("noys"); k(f"s_cbranch_execz {lab}")
        with k.cond():
            k(f"v_mul_u32_u24 v{a}, {9*2560}, v{a+1}\nv_lshl_add_u32 v{a}, v{a+2}, 4, v{a}")
            k(f"s_mul_i32 {s(T)}, {s(self.sCS)}, 320\ns_add_u32 {s(T)}, {s(T)}, {WS_YP}")
            for j in range(9):
                k(f"buffer_load_dwordx4 {v(ld+4*j,4)}, v{a}, {s(self.rWS,4)}, {s(T)} offen sc1")
                if j < 8: k(f"s_add_u32 {s(T)}, {s(T)}, 2560")
            for e in range(4): k(f"v_add_f32 v{acc+e}, v{ld+e}, v{ld+4+e}")
            for j in range(2, 9):
                for e in range(4): k(f"v_add_f32 v{acc+e}, v{acc+e}, v{ld+4*j+e}")
            k(f"v_mul_u32_u24 v{a}, 320, v{a+1}\nv_lshl_add_u32 v{a}, v{a+2}, 4, v{a}\nv_add_u32 v{a}, {L_YS}, v{a}")
            k.wait(k(f"ds_write_b128 v{a}, {v(acc,4)}"))
        k.label(lab)
        k(f"s_mov_b64 exec, {s(T+4,2)}")
        k.wait_all()
        self.vfree((a, 3), (ld, 36), (acc, 4))

    def read_sel(self):
        k = self.k
        self.sIdx = self.sget(name="idx")
        t = self.vget(1, name="rs")
        k(f"v_mov_b32 v{t}, {L_SEL}\nds_read_b32 v{t}, v{t}\nv_readfirstlane_b32 {s(self.sIdx)}, v{t}")
        self.V.free(t, 1)

def finish(g, lds=LDS_TOTAL):
    k = g.k
    k.finalize()
    hdr = open("parallel_sum__linear_kernel_hedgehog__moe_arch_mod__prompt.s.ref").read().split("\n")
    top = [l for l in hdr if l.startswith(";") and ("offset" in l or "Kernarg" in l)]
    txt = "\n".join(top) + f"\n; @launch grid=(256,1,1) block=(768,1,1) lds={lds}\n"
    txt += '.amdgcn_target "amdgcn-amd-amdhsa--gfx950"\n.text\n' + k.text()
    nv = max(g.V.high, 8)
    txt += f""".section .rodata,"a"
.p2align 6
.amdhsa_kernel {NAME}
  .amdhsa_next_free_vgpr {nv}
  .amdhsa_next_free_sgpr {max(g.S.high, 16)}
  .amdhsa_accum_offset {(nv + 3)//4*4}
  .amdhsa_group_segment_fixed_size 0
  .amdhsa_kernarg_size 96
  .amdhsa_user_sgpr_count 2
  .amdhsa_user_sgpr_kernarg_segment_ptr 1
  .amdhsa_system_sgpr_workgroup_id_x 1
.end_amdhsa_kernel
"""
    return txt

def build(opts):
    g = Kern(opts); k = g.k
    g.bars = []
    g.prologue()
    k(f"s_cmp_ge_u32 {s(g.sSlot)}, 16\ns_cbranch_scc1 L_roleQ")
    sn0 = g.snap()
    stage = opts.get("stage", 9)
    for kv in (True, False):
        nm = "KV" if kv else "Q"
        if not kv:
            k.label("L_roleQ"); g.rest(sn0)
        with k.cond():
            g.role_scalars(kv)
            g.p3_scalars()
            if kv: g.moe_scalars()
            k(f"s_cmp_ge_u32 {s(g.sWave)}, 8\ns_cbranch_scc1 L_help_{nm}")
            sn1 = g.snap()
            with k.cond():
                g.bars = []
                g.phaseR_issue()
                g.c_setup(kv)
                g.phaseR_compute()
                g.vAcc = g.vget(48 if kv else 32, 4, "acc")
                nt_max = 3 if kv else 2
                g.vF = [g.vget(4 + 4*nt_max, 4, f"frag{i}") for i in range(2)]
                for r in range(48 if kv else 32): k(f"v_mov_b32 v{g.vAcc+r}, 0")
                g.barrier("Br")
                g.phaseR_publish()
                k.wait_all(vm=False)
                g.stamp(1); g.cstamp(8)
                if kv:
                    k(f"s_cmp_ge_u32 {s(g.sWave)}, 4\ns_cbranch_scc1 L_c1_KV")
                    sn2 = g.snap(); nb = list(g.bars)
                    for p in (0, 1):
                        if p == 1:
                            k.label("L_c1_KV"); g.rest(sn2); g.bars = list(nb)
                        with k.cond():
                            g.c_loop(True, 3 if p == 0 else 2, f"KV{p}")
                            g.bars += [f"B{c}" for c in range(10)]
                            g.stamp(2); g.cstamp(9)
                            if p == 0: g.c_xch_write()
                            g.barrier("Bcs")
                            g.c_meanfix(True, p, 0)
                            if p == 0: k("s_branch L_c2_KV")
                    k.label("L_c2_KV")
                    k.sync_state()
                else:
                    g.c_loop(False, 2, "Q")
                    g.bars += [f"B{c}" for c in range(10)]
                    g.stamp(2); g.cstamp(9)
                    g.barrier("Bcs")
                    g.c_meanfix(False, 0, 0)
                for f in g.vF: g.V.free(f, 4 + 4*nt_max)
                g.vfree((g.vXa, 4), (g.vWa, 2))
                if opts.get("dump_raw"): g.dump(g.vAcc, 48 if kv else 32, 0x1000000, 48*256)
                A = g.phi_frags(kv)
                PH = g.softmax_path(kv, A)
                if opts.get("dump_phi"): g.dump(PH, 20, 0, 20*256)
                g.vfree((g.vSt, 4), (g.vStA, 1))  if not kv else None
                g.stamp(3)
                if kv:
                    g.kv_finish(PH)
                    g.vfree((g.vSt, 4), (g.vStA, 1))
                    g.stamp(4)
                    skip = k.newlabel("nomoe_c")
                    k(f"s_cmp_ge_u32 {s(g.sM)}, 108\ns_cbranch_scc1 {skip}")
                    nb0 = len(g.bars)
                    with k.cond():
                        g.c_wd_prefetch()
                        g.barrier("Bgu")
                        g.c_moe()
                        g.V.free(g.vWD, 32)
                    k.label(skip)
                    k.wait_all()
                    moe_bars = len(g.bars) - nb0
                else:
                    g.V.free(g.vAcc, 32)
                    g.barrier("Bs1")
                    g.stamp(4)
                    g.q_reduce_kv()
                    g.stamp(5)
                    g.q_out(PH)
                g.stamp(6)
                g.p3_prefetch_items(0)
                g.barrier("Bs2")
                g.stamp(7)
                g.read_sel()
                R3 = g.p3_gemm()
                g.p3_tile_write(R3)
                g.barrier("Bot")
                g.p3_items()
                g.stamps_out()
                cbars = list(g.bars)
                k("s_branch L_end")
            k.label(f"L_help_{nm}"); g.rest(sn1)
            with k.cond():
                g.bars = []
                if opts.get("hprio"): k(f"s_setprio {opts['hprio']}")
                g.h_setup(kv)
                g.h_misc(kv)
                g.h_loop(kv, nm)
                g.stamp(2)
                g.barrier("Bcs")
                def only(hw, fn):
                    lab = k.newlabel("only")
                    k(f"s_cmp_lg_u32 {s(g.sH)}, {hw}\ns_cbranch_scc1 {lab}")
                    with k.cond(): fn()
                    k.label(lab)
                def flags(base, idx_sgpr, n, name):
                    g.h_poll_flags(lambda: k(f"s_lshl_b32 {s(g.sT)}, {s(idx_sgpr)}, 7\ns_add_u32 {s(g.sT)}, {s(g.sT)}, {base}"), n, name)
                if kv:
                    mskip = k.newlabel("nomoe_h0")
                    k(f"s_cmp_ge_u32 {s(g.sM)}, 108\ns_cbranch_scc1 {mskip}")
                    with k.cond(): g.h_gu_dma()
                    k.label(mskip)
                    only(1, lambda: g.h_select(True))
                    g.barrier("Bphi"); g.barrier("Bkvo")
                    g.h_wo_dma()
                    g.barrier("Bst")
                    skip = k.newlabel("nomoe_h")
                    k(f"s_cmp_ge_u32 {s(g.sM)}, 108\ns_cbranch_scc1 {skip}")
                    with k.cond():
                        k("s_waitcnt vmcnt(25)")
                        g.barrier("Bgu"); g.barrier("Bh"); g.barrier("By")
                    k.label(skip)
                else:
                    g.h_wo_dma()
                    only(1, lambda: g.h_select(False))
                    tg = g.sget(name="hg")
                    k(f"s_lshr_b32 {s(tg)}, {s(g.sGrp)}, 1")
                    only(0, lambda: flags(WS_FLAG1, tg, 16, "f1"))
                    g.barrier("Bs1"); g.barrier("Bsum"); g.barrier("Bkvt"); g.barrier("Bo")
                g.p3_prefetch_items(0)
                t8 = g.sget(name="tb8")
                k(f"s_lshr_b32 {s(t8)}, {s(g.sT32)}, 2")
                only(0, lambda: flags(WS_FLAG2, t8, 16, "f2"))
                k.wait_all()
                g.barrier("Bs2")
                g.read_sel()
                ys = k.newlabel("noowner")
                k(f"s_lshr_b32 {s(g.sT)}, {s(g.sIdx)}, 6\ns_cmp_lg_u32 {s(g.sT)}, {s(g.sT32)}\ns_cbranch_scc1 {ys}")
                with k.cond(): g.h_ysum()
                k.label(ys)
                k.wait_all()
                g.barrier("Bot")
                g.p3_items()
                g.stamps_out()
                assert len(g.bars) == len(cbars), (g.bars, cbars)
                k("s_branch L_end")
    k.label("L_end")
    k("s_endpgm")
    return finish(g), g

if __name__ == "__main__":
    import json
    opts = json.loads(sys.argv[2]) if len(sys.argv) > 2 else {}
    txt, g = build(opts)
    open(sys.argv[1], "w").write(txt)
    print("vgpr", g.V.high, "sgpr", g.S.high, "lines", txt.count("\n"))
```
